```python
import torch

def _softmax(x, axis=-1):
    return torch.softmax(x, dim=axis)
def _gelu(x):
    return torch.nn.functional.gelu(x, approximate="tanh")
def _silu(x):
    return torch.nn.functional.silu(x)
def _sigmoid(x):
    return torch.sigmoid(x)
def _layernorm(x, axis=-1, eps=1e-5):
    m = x.mean(dim=axis, keepdim=True)
    v = x.var(dim=axis, keepdim=True, unbiased=False)
    return (x - m) / torch.sqrt(v + eps)
def _scatter_add(tgt, idx, src, axis=0):
    return tgt.clone().index_add_(axis, idx, src)
def _segment_sum(src, seg, n):
    out = torch.zeros((n,) + src.shape[1:], dtype=src.dtype)
    return out.index_add_(0, seg, src)
def _pad(x, pw):
    flat = tuple(v for pair in reversed(pw) for v in pair)
    return torch.nn.functional.pad(x, flat)

kernel_name = 'gated_mix__ssm_conv_s4__dense_activation_squared_relu__prompt'

def setup_inputs():

    _w = (lambda a: (lambda t: t.to(torch.bfloat16) if t.is_floating_point() else t)(torch.as_tensor(a)))
    def _A_setup():
        B, L, D, N = 1, 2048, 640, 192
        A_re = -(lambda _x: torch.exp(torch.as_tensor(_x)))((lambda *s: torch.randn(*s, dtype=torch.bfloat16) * 6.4)(D, N))
        A_im = torch.pi * (lambda *s: torch.randn(*s, dtype=torch.bfloat16) * 0.1)(D, N)
        B_re = (lambda *s: torch.randn(*s, dtype=torch.bfloat16) * 0.2)(D, N)
        B_im = (lambda *s: torch.randn(*s, dtype=torch.bfloat16) * 0.2)(D, N)
        C_re = (lambda *s: torch.randn(*s, dtype=torch.bfloat16) * 0.2)(D, N)
        C_im = (lambda *s: torch.randn(*s, dtype=torch.bfloat16) * 0.2)(D, N)
        log_dt = (lambda *s: torch.randn(*s, dtype=torch.bfloat16) * 0.1)(D) * 0.5 - 4.0
        Dskip = (lambda *s: torch.randn(*s, dtype=torch.bfloat16) * 0.1)(D)
        return {
            "u": _w((lambda *s: torch.randn(*s, dtype=torch.bfloat16) * 0.05)(B, L, D)),
            "A_re": _w(A_re),
            "A_im": _w(A_im),
            "B_re": _w(B_re),
            "B_im": _w(B_im),
            "C_re": _w(C_re),
            "C_im": _w(C_im),
            "log_dt": _w(log_dt),
            "Dskip": _w(Dskip),
        }
    _A_in = _A_setup()

    def _B_setup():
        B, S, D, F = 1, 2048, 640, 1536
        return {
            "x": _w((lambda *s: torch.randn(*s, dtype=torch.bfloat16) * 0.05)(B, S, D)),
            "w1": _w((lambda *s: torch.randn(*s, dtype=torch.bfloat16) * 0.05)(D, F)),
            "b1": _w((lambda *s: torch.randn(*s, dtype=torch.bfloat16) * 0.05)(F)),
            "w2": _w((lambda *s: torch.randn(*s, dtype=torch.bfloat16) * 0.05)(F, D)),
            "b2": _w((lambda *s: torch.randn(*s, dtype=torch.bfloat16) * 0.05)(D)),
        }
    _B_in = _B_setup()

    return {
        "A_u": _A_in["u"],
        "A_A_re": _A_in["A_re"],
        "A_A_im": _A_in["A_im"],
        "A_B_re": _A_in["B_re"],
        "A_B_im": _A_in["B_im"],
        "A_C_re": _A_in["C_re"],
        "A_C_im": _A_in["C_im"],
        "A_log_dt": _A_in["log_dt"],
        "A_Dskip": _A_in["Dskip"],
        "B_x": _B_in["x"],
        "B_w1": _B_in["w1"],
        "B_b1": _B_in["b1"],
        "B_w2": _B_in["w2"],
        "B_b2": _B_in["b2"],
        "gate_w": _w((lambda *s: torch.randn(*s, dtype=torch.bfloat16) * 0.05)(640) * 16.0),
    }

def reference(A_u, A_A_re, A_A_im, A_B_re, A_B_im, A_C_re, A_C_im, A_log_dt, A_Dskip, B_x, B_w1, B_b1, B_w2, B_b2, gate_w):
    def _A_ref(u, A_re, A_im, B_re, B_im, C_re, C_im, log_dt, Dskip):
        Bsz, L, D = u.shape
        dt = torch.exp(log_dt)[:, None]
        A = A_re + 1j * A_im
        Bc = B_re + 1j * B_im
        Cc = C_re + 1j * C_im
        logdA = dt * A
        dB = dt * Bc
        l = (lambda x, dt: x.to(dt))(torch.arange(L), A_re.dtype)
        P = torch.exp(logdA[:, :, None] * l[None, None, :])
        K = torch.einsum("dn,dnl,dn->dl", Cc, P, dB).real
        L2 = 2 * L
        Kp = _pad(K, ((0, 0), (0, L)))
        up = (lambda x, *d: x.permute(*d))(u, 0, 2, 1)
        up = _pad(up, ((0, 0), (0, 0), (0, L)))
        Kf = (lambda x, axes=(-2,-1): torch.fft.rfft2(x.float(), dim=axes))(Kp[:, None, :], axes=(-2, -1))
        Uf = (lambda x, axes=(-2,-1): torch.fft.rfft2(x.float(), dim=axes))(up[:, :, None, :], axes=(-2, -1))
        Yf = Uf * Kf[None, :, :, :]
        y = (lambda x, s, axes=(-2,-1): torch.fft.irfft2(x, s=s, dim=axes).to(torch.bfloat16))(Yf, (1, L2), axes=(-2, -1))[:, :, 0, :L]
        y = (lambda x, *d: x.permute(*d))(y, 0, 2, 1) + u * Dskip[None, None, :]
        return y

    def _B_ref(x, w1, b1, w2, b2):
        h = torch.einsum("bsd,df->bsf", x, w1) + b1
        zero = torch.zeros_like(h)
        r = torch.where(h > zero, h, zero)
        h = r * r
        out = torch.einsum("bsf,fd->bsd", h, w2) + b2
        return out

    x = A_u
    g = _sigmoid((x * gate_w).sum(-1, keepdims=True))
    a = _A_ref(x, A_A_re, A_A_im, A_B_re, A_B_im, A_C_re, A_C_im, A_log_dt, A_Dskip)
    b = _B_ref(x, B_w1, B_b1, B_w2, B_b2)
    return g * a + (1 - g) * b
```

```python
import re

REG_RE = re.compile(r'(?<![\w.])([vs])(?:\[(\d+):(\d+)\]|(\d+))(?![\w])')
TRANS = ('v_exp_f32', 'v_log_f32', 'v_rcp_f32', 'v_rsq_f32', 'v_sqrt_f32', 'v_sin_f32', 'v_cos_f32')


def regs_of(op):
    out = set()
    op = op.strip()
    for m in REG_RE.finditer(op):
        k = m.group(1)
        if m.group(4) is not None:
            out.add((k, int(m.group(4))))
        else:
            for i in range(int(m.group(2)), int(m.group(3)) + 1):
                out.add((k, i))
    if re.search(r'\bvcc\b', op):
        out.add(('c', 'vcc'))
    if re.search(r'\bm0\b', op):
        out.add(('c', 'm0'))
    if re.search(r'\bexec\b', op):
        out.add(('c', 'exec'))
    return out


def V(a, n=1):
    return f"v{a}" if n == 1 else f"v[{a}:{a+n-1}]"


def S(a, n=1):
    return f"s{a}" if n == 1 else f"s[{a}:{a+n-1}]"


class Ins:
    __slots__ = ('text', 'op', 'cls', 'defs', 'uses', 'srcc', 'dst', 'states', 'dpp', 'wide_store', 'data', 'usesm0')


def parse(text):
    t = text.split(';')[0].strip()
    parts = t.split(None, 1)
    op = parts[0]
    rest = parts[1] if len(parts) > 1 else ''
    ops, depth, cur = [], 0, ''
    for ch in rest:
        if ch == '[':
            depth += 1
        if ch == ']':
            depth -= 1
        if ch == ',' and depth == 0:
            ops.append(cur.strip())
            cur = ''
        else:
            cur += ch
    if cur.strip():
        ops.append(cur.strip())
    clean = [re.sub(r'\b(op_sel|op_sel_hi|neg_lo|neg_hi):\[[^\]]*\]', '', o) for o in ops]
    i = Ins()
    i.text = text
    i.op = op
    i.defs = set()
    i.uses = set()
    i.srcc = set()
    i.dst = set()
    i.states = 1
    i.dpp = '_dpp' in op
    i.wide_store = False
    i.data = set()
    i.usesm0 = False
    base = op.replace('_e32', '').replace('_e64', '').replace('_dpp', '')
    R = [regs_of(o) for o in clean]
    allr = set().union(*R) if R else set()
    if op.startswith('v_mfma'):
        i.cls = 'mfma'
        i.defs = R[0]
        i.uses = R[1] | R[2] | R[3]
        i.srcc = R[3]
    elif op.startswith('v_'):
        i.cls = 'trans' if base in TRANS else 'valu'
        if base in ('v_swap_b32',) or base.startswith('v_permlane'):
            i.defs = R[0] | R[1]
            i.uses = R[0] | R[1]
        elif base.startswith('v_cmp'):
            i.defs = R[0]
            i.uses = set().union(*R[1:])
        elif base in ('v_add_co_u32', 'v_addc_co_u32', 'v_sub_co_u32'):
            i.defs = R[0] | R[1]
            i.uses = set().union(*R[2:])
        elif base in ('v_fmac_f32', 'v_writelane_b32') or i.dpp:
            i.defs = R[0]
            i.uses = allr
        elif base == 'v_nop':
            pass
        else:
            i.defs = R[0]
            i.uses = set().union(*R[1:]) if len(R) > 1 else set()
    elif op.startswith('buffer_') or op.startswith('global_'):
        i.cls = 'vmem'
        lds = bool(re.search(r'\blds\b', rest))
        if 'load' in op and not lds:
            i.dst = R[0]
            i.uses = set().union(*R[1:])
        else:
            i.uses = allr
            if 'store' in op:
                i.data = R[0] if op.startswith('buffer_') else R[1]
                i.wide_store = 'x4' in op or 'x3' in op
        i.usesm0 = lds
    elif op.startswith('ds_'):
        i.cls = 'ds'
        if op.startswith('ds_read') or '_rtn' in op or 'permute' in op:
            i.dst = R[0]
            i.uses = set().union(*R[1:]) if len(R) > 1 else set()
        else:
            i.uses = allr
        i.usesm0 = 'addtid' in op
    elif op.startswith('s_load') or op.startswith('s_memtime') or op.startswith('s_memrealtime'):
        i.cls = 'smem'
        i.dst = R[0]
        i.uses = set().union(*R[1:]) if len(R) > 1 else set()
    elif op == 's_nop':
        i.cls = 'nop'
        i.states = int(rest, 0) + 1
    elif op.startswith('s_'):
        i.cls = 'salu'
        if op.startswith(('s_cmp', 's_cbranch', 's_branch', 's_waitcnt', 's_barrier', 's_endpgm', 's_setprio', 's_bitcmp')):
            i.uses = allr
        else:
            i.defs = R[0]
            i.uses = set().union(*R[1:]) if len(R) > 1 else set()
    else:
        raise ValueError("unknown instr " + text)
    return i


def need_states(p, c):
    n = 0
    pv = {r for r in p.defs if r[0] == 'v'}
    ps = {r for r in p.defs if r[0] in 'sc'}
    isvalu = p.cls in ('valu', 'trans')
    cvalu = c.cls in ('valu', 'trans')
    if isvalu:
        if c.cls == 'mfma' and pv & c.uses:
            n = max(n, 2)
        if cvalu and pv & c.uses:
            if c.dpp or c.op.startswith('v_permlane'):
                n = max(n, 2)
            if c.op.startswith(('v_readfirstlane', 'v_readlane')):
                n = max(n, 1)
            if p.cls == 'trans':
                n = max(n, 1)
        if ps:
            if cvalu and ps & c.uses:
                n = max(n, 4 if c.op.startswith(('v_readlane', 'v_writelane')) else 2)
            if c.cls == 'vmem' and ps & c.uses:
                n = max(n, 5)
            if c.cls in ('salu', 'smem') and ps & c.uses:
                n = max(n, 1)
    if p.cls == 'mfma':
        big = '32x32' in p.op
        if c.cls == 'mfma':
            ab = c.uses - c.srcc
            if p.defs & ab:
                n = max(n, 12 if big else 8)
            if p.defs & c.srcc and p.defs != c.srcc:
                n = max(n, 10 if big else 6)
        elif cvalu:
            if p.defs & (c.uses | c.defs):
                n = max(n, 12 if big else 8)
            if p.srcc & c.defs:
                n = max(n, 7 if big else 3)
        elif c.cls in ('vmem', 'ds'):
            if p.defs & (c.uses | c.dst):
                n = max(n, 12 if big else 8)
    if p.cls == 'salu' and ('c', 'm0') in p.defs and c.usesm0:
        n = max(n, 1)
    if p.cls == 'vmem' and p.wide_store:
        if p.data & (c.defs | c.dst):
            n = max(n, 2)
    return n


class Asm:
    def __init__(self):
        self.out = []
        self.hist = []
        self.vm = []
        self.lg = []
        self.nops = 0
        self.uid = 0

    def raw(self, t):
        self.out.append(t)

    def comment(self, t):
        self.out.append("    ; " + t)

    def label(self, name):
        self.out.append(name + ":")

    def newlabel(self, stem):
        self.uid += 1
        return f"L_{stem}_{self.uid}"

    def align(self, n=3):
        self.out.append(f"    .p2align {n}")

    def _push(self, i):
        self.out.append("    " + i.text)
        self.hist.append(i)
        if len(self.hist) > 24:
            self.hist.pop(0)

    def _waitcnt(self, vm=None, lg=None):
        t = "s_waitcnt"
        if vm is not None:
            t += f" vmcnt({vm})"
            self.vm = self.vm[len(self.vm) - vm:] if vm else []
        if lg is not None:
            t += f" lgkmcnt({lg})"
            self.lg = self.lg[len(self.lg) - lg:] if lg else []
        self._push(parse(t))

    def _need(self, q, pred, cap):
        last = -1
        for k, e in enumerate(q):
            if pred(e):
                last = k
        if last < 0:
            return None
        return min(len(q) - 1 - last, cap)

    def wait(self, vmtag=None, lgtag=None):
        vm = lg = None
        if vmtag is not None:
            vm = self._need(self.vm, lambda e: e[0] == vmtag, 63)
        if lgtag is not None:
            lg = self._need(self.lg, lambda e: e[0] == lgtag, 15)
            if lg is not None and any(e[2] for e in self.lg):
                lg = 0
        if vm is not None or lg is not None:
            self._waitcnt(vm, lg)

    def waitall(self, vm=False, lg=False):
        self._waitcnt(0 if vm else None, 0 if lg else None)

    def __call__(self, text, tag=None):
        for line in text.split('\n'):
            line = line.strip()
            if line:
                self.emit(line, tag)

    def emit(self, text, tag=None):
        i = parse(text)
        touch = i.uses | i.defs | i.dst
        vm = self._need(self.vm, lambda e: e[1] & touch, 63)
        lg = self._need(self.lg, lambda e: e[1] & touch, 15)
        if lg is not None and any(e[2] for e in self.lg):
            lg = 0
        if vm is not None or lg is not None:
            self._waitcnt(vm, lg)
        need = 0
        dist = 0
        for p in reversed(self.hist):
            need = max(need, need_states(p, i) - dist)
            dist += p.states
            if dist >= 20:
                break
        while need > 0:
            k = min(need, 16)
            self._push(parse(f"s_nop {k-1}"))
            self.nops += k
            need -= k
        self._push(i)
        if i.cls == 'vmem':
            self.vm.append((tag, i.dst))
            assert len(self.vm) <= 63, "vmcnt overflow"
        elif i.cls == 'ds':
            self.lg.append((tag, i.dst, False))
        elif i.cls == 'smem':
            self.lg.append((tag, i.dst, True))

    def snapshot(self):
        return (list(self.hist), list(self.vm), list(self.lg))

    def restore(self, s):
        self.hist, self.vm, self.lg = list(s[0]), list(s[1]), list(s[2])

    def fence(self, n=8):
        worst = 0
        dist = 0
        for p in reversed(self.hist):
            if p.cls == 'mfma':
                worst = max(worst, n - dist)
            elif p.cls in ('valu', 'trans'):
                w = 5 if any(r[0] in 'sc' for r in p.defs) else 2
                worst = max(worst, w - dist)
            elif p.cls == 'vmem' and p.wide_store:
                worst = max(worst, 2 - dist)
            dist += p.states
        if worst > 0:
            self._push(parse(f"s_nop {worst-1}"))

    def text(self):
        return "\n".join(self.out) + "\n"
```

```python
import sys
import math
import struct
from asmlib import Asm, V, S

NAME = "gated_mix__ssm_conv_s4__dense_activation_squared_relu__prompt"
KERNEL = NAME + "_kernel"

WS_EPC = 0
WS_EPR = 1024
WS_F1 = 8192
WS_F2 = 65536
WS_F3 = 196608
WS_PROF = 0x50000
WS_UT = 0x80000
UT_ROW = 4224
WS_AT = 0x380000
AT_BLK = 10368
WS_W2T = 0x680000
WS_H = 0x880000
WS_SIZE = 0x1000000
L_KA = 0
KA_SZ = 4608
L_U = 13824
U_SZ = 4608
L_FLAG = 27648
L_X = 28672
L_RING = 110592
RING_SZ = 12288
LDS_SIZE = 163840
FL_X, FL_E1, FL_U, FL_G1 = 0, 4, 8, 12
ROWB = 288
K_RA, K_RB, K_N2, K_N3 = 0, 1216, 2368, 2880

SPIN_LDS = 400000
SPIN_GLB = 40000

P_U, P_ARE, P_AIM, P_BRE, P_BIM, P_CRE, P_CIM, P_LDT = 4, 6, 8, 10, 12, 14, 16, 18
P_DSK, P_BX, P_W1, P_B1, P_W2, P_B2, P_GW, P_OUT = 20, 22, 24, 26, 28, 30, 32, 34
P_DBG, P_WS = 36, 38
sW, sR, sJ, sTAG = 40, 41, 42, 43
sT0, sT1, sT2, sT3, sCNT = 44, 45, 46, 47, 48
R_WS, R_A, R_B, R_C = 52, 56, 60, 64
sP0 = 68
sSTAMP = 84


def f32(x):
    return "0x%08x" % struct.unpack("<I", struct.pack("<f", x))[0]


class Gen:
    def __init__(self, prof=False, **opt):
        self.a = Asm()
        self.prof = prof
        self.opt = dict(w2pre=8, prio_gemm=0, prio_conv=0)
        self.opt.update(opt)
        self.nstamp = 0

    def srd(self, dst, ptr, size):
        a = self.a
        a(f"s_mov_b32 {S(dst)}, {S(ptr)}")
        a(f"s_mov_b32 {S(dst+1)}, {S(ptr+1)}")
        a(f"s_mov_b32 {S(dst+2)}, {hex(size)}")
        a(f"s_mov_b32 {S(dst+3)}, 0x20000")

    def stamp(self):
        if not self.prof:
            return
        assert self.nstamp < 9
        self.a(f"s_memrealtime {S(sSTAMP + 2*self.nstamp, 2)}")
        self.nstamp += 1

    def dump_stamps(self, vt):
        if not self.prof:
            return
        a = self.a
        a.waitall(lg=True)
        a(f"s_lshl_b32 {S(sT0)}, s2, 3")
        a(f"s_add_u32 {S(sT0)}, {S(sT0)}, {S(sW)}")
        a(f"s_lshl_b32 {S(sT0)}, {S(sT0)}, 6")
        a(f"s_add_u32 {S(sT0)}, {S(sT0)}, {WS_PROF}")
        a("s_mov_b64 exec, 1")
        for k in range(self.nstamp):
            a(f"v_mov_b32 {V(vt)}, {S(sSTAMP + 2*k)}")
            a(f"buffer_store_dword {V(vt)}, off, {S(R_WS,4)}, {S(sT0)} offset:{4*k}")
            a.waitall(vm=True)
        a("s_mov_b64 exec, -1")

    def spin_lds(self, vaddr, off, vt, target):
        a = self.a
        a.waitall(lg=True)
        l, d = a.newlabel("spin"), a.newlabel("spun")
        a(f"s_mov_b32 {S(sCNT)}, 0")
        a.fence()
        a.label(l)
        a(f"ds_read_b32 {V(vt)}, {V(vaddr)} offset:{off}")
        a(f"s_add_u32 {S(sCNT)}, {S(sCNT)}, 1")
        a(f"v_readfirstlane_b32 {S(sT0)}, {V(vt)}")
        a(f"s_cmp_ge_u32 {S(sT0)}, {target}")
        a(f"s_cbranch_scc1 {d}")
        a(f"s_cmp_lt_u32 {S(sCNT)}, {SPIN_LDS}")
        a(f"s_cbranch_scc1 {l}")
        a.label(d)

    def poll(self, loads, execmask):
        a = self.a
        l, d = a.newlabel("poll"), a.newlabel("polled")
        a(f"s_mov_b32 {S(sCNT)}, 0")
        if execmask is not None:
            a("s_mov_b32 exec_hi, 0" if execmask == "0xffffffff" else f"s_mov_b64 exec, {execmask}")
        a.fence()
        a.label(l)
        for (vd, vo, so) in loads:
            a(f"buffer_load_dword {V(vd)}, {V(vo)}, {S(R_WS,4)}, {S(so)} offen sc1")
        a(f"s_add_u32 {S(sCNT)}, {S(sCNT)}, 1")
        a.waitall(vm=True)
        if len(loads) == 2:
            a(f"v_xor_b32 {V(loads[0][0])}, {S(sTAG)}, {V(loads[0][0])}")
            a(f"v_xor_b32 {V(loads[1][0])}, {S(sTAG)}, {V(loads[1][0])}")
            a(f"v_or_b32 {V(loads[0][0])}, {V(loads[0][0])}, {V(loads[1][0])}")
            a(f"v_cmp_ne_u32 vcc, 0, {V(loads[0][0])}")
        else:
            a(f"v_cmp_ne_u32 vcc, {S(sTAG)}, {V(loads[0][0])}")
        a(f"s_cmp_lt_u32 {S(sCNT)}, {SPIN_GLB}")
        a("s_nop 3")
        a(f"s_cbranch_vccz {d}")
        a(f"s_cbranch_scc1 {l}")
        a.label(d)
        if execmask is not None:
            a("s_mov_b64 exec, -1")

    def epoch_load(self, vt, grp, base):
        a = self.a
        a(f"s_lshl_b32 {S(sT0)}, {S(grp)}, 7")
        if base:
            a(f"s_add_u32 {S(sT0)}, {S(sT0)}, {base}")
        a(f"buffer_load_dword {V(vt)}, off, {S(R_WS,4)}, {S(sT0)} sc1")

    def epoch_to_tag(self, vt):
        a = self.a
        a(f"v_readfirstlane_b32 {S(sTAG)}, {V(vt)}")
        a(f"s_mul_i32 {S(sTAG)}, {S(sTAG)}, 1664525")
        a(f"s_add_u32 {S(sTAG)}, {S(sTAG)}, 1013904223")

    def put_word(self, vt, soff):
        a = self.a
        a(f"v_mov_b32 {V(vt)}, {S(sTAG)}")
        a("s_mov_b64 exec, 1")
        a(f"buffer_store_dword {V(vt)}, off, {S(R_WS,4)}, {S(soff)} sc1")
        a("s_mov_b64 exec, -1")

    def div_mod(self, q, m, e, d, magic):
        a = self.a
        a(f"v_mul_u32_u24 {V(q)}, {magic}, {V(e)}")
        a(f"v_lshrrev_b32 {V(q)}, 16, {V(q)}")
        a(f"v_mul_u32_u24 {V(m)}, {d}, {V(q)}")
        a(f"v_sub_u32 {V(m)}, {V(e)}, {V(m)}")

    def build(self):
        a = self.a
        a.raw(open(f"cdna_kernels/{NAME}.s.ref").read().split("; Override launch")[0].rstrip())
        a.raw(f"; @launch grid=(256,1,1) block=(512,1,1) lds={LDS_SIZE}")
        a.raw('.amdgcn_target "amdgcn-amd-amdhsa--gfx950"')
        a.raw(".text")
        a.raw(f".globl {KERNEL}")
        a.raw(".p2align 8")
        a.raw(f".type {KERNEL},@function")
        a.label(KERNEL)
        a("s_cmp_ge_u32 s2, 256")
        a("s_cbranch_scc1 L_end")
        self.stamp()
        a("s_load_dwordx16 s[4:19], s[0:1], 0")
        a("s_load_dwordx16 s[20:35], s[0:1], 64")
        a("s_load_dwordx4 s[36:39], s[0:1], 128")
        a("v_lshrrev_b32 v2, 6, v0")
        a("v_and_b32 v1, 63, v0")
        a(f"v_readfirstlane_b32 {S(sW)}, v2")
        a(f"s_lshl_b32 {S(sR)}, s2, 2")
        a(f"s_and_b32 {S(sR)}, {S(sR)}, 24")
        a(f"s_lshr_b32 {S(sT0)}, s2, 5")
        a(f"s_add_u32 {S(sR)}, {S(sR)}, {S(sT0)}")
        a(f"s_lshl_b32 {S(sJ)}, s2, 2")
        a(f"s_and_b32 {S(sJ)}, {S(sJ)}, 4")
        a(f"s_bfe_u32 {S(sT0)}, s2, 0x20003")
        a(f"s_add_u32 {S(sJ)}, {S(sJ)}, {S(sT0)}")
        snap = a.snapshot()
        ns = self.nstamp
        a(f"s_cmp_ge_u32 {S(sW)}, 4")
        a("s_cbranch_scc1 L_notgemm")
        self.gemm()
        a.label("L_notgemm")
        a.restore(snap)
        self.nstamp = ns
        a(f"s_cmp_eq_u32 {S(sW)}, 7")
        a("s_cbranch_scc1 L_helper")
        self.conv()
        a.label("L_helper")
        a.restore(snap)
        self.nstamp = ns
        self.helper()
        a.label("L_end")
        a("s_endpgm")
        a.raw('.section .rodata,"a"')
        a.raw(".p2align 6")
        a.raw(f".amdhsa_kernel {KERNEL}")
        a.raw("""  .amdhsa_next_free_vgpr 256
  .amdhsa_next_free_sgpr 102
  .amdhsa_accum_offset 256
  .amdhsa_group_segment_fixed_size 0
  .amdhsa_kernarg_size 144
  .amdhsa_user_sgpr_count 2
  .amdhsa_user_sgpr_kernarg_segment_ptr 1
  .amdhsa_system_sgpr_workgroup_id_x 1
.end_amdhsa_kernel""")
        return a.text()

    def helper(self):
        a = self.a
        vOFF = 2
        vLIN, vEP, vT, vT2, vFL = 7, 8, 9, 10, 11
        vA, vB, vC = 12, 13, 14
        W = 16
        T = 56
        for p in range(5):
            a(f"v_add_u32 {V(vT)}, {64*p}, v1")
            self.div_mod(vOFF+p, vT2, vT, 10, 6554)
            a(f"v_mul_u32_u24 {V(vOFF+p)}, 1280, {V(vOFF+p)}")
            a(f"v_lshl_add_u32 {V(vOFF+p)}, {V(vT2)}, 4, {V(vOFF+p)}")
        a(f"v_lshlrev_b32 {V(vLIN)}, 4, v1")
        sX0, sX1 = sP0, sP0+1
        a(f"s_mul_i32 {S(sX0)}, {S(sR)}, {64*1280}")
        a(f"s_mul_i32 {S(sT0)}, {S(sJ)}, 160")
        a(f"s_add_u32 {S(sX0)}, {S(sX0)}, {S(sT0)}")
        a(f"s_add_u32 {S(sX1)}, {S(sX0)}, {32*1280}")
        a(f"v_mov_b32 {V(vFL)}, {L_FLAG}")
        for k in range(4):
            a(f"v_mov_b32 {V(T+k)}, 0")
        a.waitall(lg=True)
        a(f"ds_write_b128 {V(vFL)}, {V(T,4)}")
        self.srd(R_WS, P_WS, WS_SIZE)
        self.srd(R_A, P_U, 2621440)
        self.srd(R_B, P_W2, 1966080)
        self.epoch_load(vEP, sJ, WS_EPC)
        for h in range(2):
            for p in range(5):
                a(f"s_mov_b32 m0, {L_U + (5*h+p)*1024}")
                a(f"buffer_load_dwordx4 {V(vOFF+p)}, {S(R_A,4)}, {S(sX0+h)} offen lds", tag='xp')
        for h in range(2):
            for p in range(5):
                a(f"buffer_load_dwordx4 {V(W+4*(5*h+p),4)}, {V(vOFF+p)}, {S(R_B,4)}, {S(sX0+h)} offen")
        a(f"v_lshrrev_b32 {V(vT)}, 4, v1")
        a(f"v_bfe_u32 {V(vT2)}, v1, 2, 2")
        a(f"v_lshl_add_u32 {V(vA)}, {V(vT)}, 3, {V(vT2)}")
        a(f"v_mul_u32_u24 {V(vA)}, 160, {V(vA)}")
        a(f"v_and_b32 {V(vC)}, 3, v1")
        a(f"v_lshl_add_u32 {V(vA)}, {V(vC)}, 3, {V(vA)}")
        a(f"v_add_u32 {V(vA)}, {L_U}, {V(vA)}")
        a(f"v_lshrrev_b32 {V(vB)}, 2, v1")
        a(f"v_mul_u32_u24 {V(vB)}, 160, {V(vB)}")
        a(f"v_mul_u32_u24 {V(vC)}, 40, {V(vC)}")
        a(f"v_add_u32 {V(vB)}, {V(vB)}, {V(vC)}")
        a(f"v_add_u32 {V(vB)}, {L_U}, {V(vB)}")
        vW0, vW1, vRD, vST = 96, 97, 98, 99
        a(f"v_and_b32 {V(vT2)}, 7, v1")
        a(f"v_xor_b32 {V(vW0)}, {V(vT)}, {V(vT2)}")
        a(f"v_lshlrev_b32 {V(vW0)}, 4, {V(vW0)}")
        a(f"v_and_b32 {V(vC)}, 15, v1")
        a(f"v_lshl_add_u32 {V(vW0)}, {V(vC)}, 7, {V(vW0)}")
        a(f"v_xor_b32 {V(vW1)}, 64, {V(vW0)}")
        a(f"v_add_u32 {V(vW0)}, {L_U}, {V(vW0)}")
        a(f"v_add_u32 {V(vW1)}, {L_U}, {V(vW1)}")
        a(f"v_lshrrev_b32 {V(vC)}, 3, v1")
        a(f"v_xor_b32 {V(vRD)}, {V(vC)}, {V(vT2)}")
        a(f"v_lshlrev_b32 {V(vRD)}, 4, {V(vRD)}")
        a(f"v_lshl_add_u32 {V(vRD)}, {V(vC)}, 7, {V(vRD)}")
        a(f"v_add_u32 {V(vRD)}, {L_U}, {V(vRD)}")
        a(f"v_mul_u32_u24 {V(vST)}, {UT_ROW}, {V(vC)}")
        a(f"v_lshl_add_u32 {V(vST)}, {V(vT2)}, 4, {V(vST)}")
        self.epoch_to_tag(vEP)
        a.waitall(lg=True)
        a("s_barrier")
        self.stamp()
        a.wait(vmtag='xp')
        for dl in range(5):
            for h2 in range(2):
                for hh in range(2):
                    r = T + 8*dl + 4*h2 + 2*hh
                    a(f"ds_read_b64_tr_b16 {V(r,2)}, {V(vA)} offset:{(32*h2+4*hh)*160 + 32*dl}")
        a.waitall(lg=True)
        for dl in range(5):
            for h2 in range(2):
                a(f"ds_write_b128 {V(vW0+h2)}, {V(T+8*dl+4*h2,4)} offset:{dl*2048}")
        for p in range(10):
            a(f"ds_read_b128 {V(T+4*p,4)}, {V(vRD)} offset:{p*1024}")
        sU = sP0+2
        a(f"s_mul_i32 {S(sU)}, {S(sJ)}, {80*UT_ROW}")
        a(f"s_lshl_b32 {S(sT0)}, {S(sR)}, 7")
        a(f"s_add_u32 {S(sU)}, {S(sU)}, {S(sT0)}")
        a(f"s_add_u32 {S(sU)}, {S(sU)}, {WS_UT}")
        for p in range(10):
            a(f"buffer_store_dwordx4 {V(T+4*p,4)}, {V(vST)}, {S(R_WS,4)}, {S(sU)} offen sc1")
            if p < 9:
                a(f"s_add_u32 {S(sU)}, {S(sU)}, {8*UT_ROW}")
        a(f"s_cmp_ge_u32 {S(sR)}, 24")
        a("s_cbranch_scc1 L_h_now2")
        a(f"v_add_u32 {V(vC)}, {L_U}, {V(vLIN)}")
        for p in range(10):
            a(f"ds_write_b128 {V(vC)}, {V(W+4*p,4)} offset:{p*1024}")
        for ks in range(2):
            for dl in range(5):
                for hh in range(2):
                    r = W + 4*(5*ks+dl) + 2*hh
                    a(f"ds_read_b64_tr_b16 {V(r,2)}, {V(vB)} offset:{(32*ks+16*hh)*160 + 8*dl}")
        a(f"s_mul_i32 {S(sU)}, {S(sJ)}, {48*5120}")
        a(f"s_mul_i32 {S(sT0)}, {S(sR)}, {2*5120}")
        a(f"s_add_u32 {S(sU)}, {S(sU)}, {S(sT0)}")
        a(f"s_add_u32 {S(sU)}, {S(sU)}, {WS_W2T}")
        for p in range(10):
            a(f"buffer_store_dwordx4 {V(W+4*p,4)}, {V(vLIN)}, {S(R_WS,4)}, {S(sU)} offen offset:{(p % 4)*1024} sc1")
            if p % 4 == 3:
                a(f"s_add_u32 {S(sU)}, {S(sU)}, 4096")
        a.label("L_h_now2")
        a.fence()
        a.waitall(lg=True)
        a(f"v_lshlrev_b32 {V(vC)}, 3, v1")
        a(f"v_mov_b32 {V(100)}, 0")
        a(f"v_mov_b32 {V(101)}, 0")
        for cw in range(3):
            a(f"ds_write_b64 {V(vC)}, {V(100,2)} offset:{L_U + cw*U_SZ}")
        sF = sP0+3
        a(f"s_lshl_b32 {S(sF)}, {S(sJ)}, 12")
        a(f"s_add_u32 {S(sF)}, {S(sF)}, {WS_F1}")
        a(f"s_lshl_b32 {S(sT1)}, {S(sR)}, 7")
        a(f"s_add_u32 {S(sT1)}, {S(sT1)}, {S(sF)}")
        a(f"v_lshlrev_b32 {V(vA)}, 7, v1")
        a.waitall(vm=True)
        self.put_word(vT, sT1)
        self.stamp()
        self.poll([(vT2, vA, sF)], "0xffffffff")
        self.stamp()
        a(f"v_mov_b32 {V(vT)}, 1")
        a(f"ds_write_b32 {V(vFL)}, {V(vT)} offset:{FL_E1}")
        a(f"s_lshr_b32 {S(sU)}, {S(sR)}, 1")
        a(f"s_mul_i32 {S(sU)}, {S(sU)}, 5")
        a(f"s_and_b32 {S(sT1)}, {S(sR)}, 1")
        a(f"s_mul_i32 {S(sT0)}, {S(sT1)}, 3")
        a(f"s_add_u32 {S(sU)}, {S(sU)}, {S(sT0)}")
        a(f"s_mul_i32 {S(sT0)}, {S(sJ)}, 80")
        a(f"s_add_u32 {S(sU)}, {S(sU)}, {S(sT0)}")
        a(f"s_mul_i32 {S(sU)}, {S(sU)}, {UT_ROW}")
        a(f"s_add_u32 {S(sU)}, {S(sU)}, {WS_UT}")
        for cw in range(3):
            if cw == 2:
                a(f"s_cmp_eq_u32 {S(sT1)}, 1")
                a("s_cbranch_scc1 L_h_nou2")
            a(f"s_mov_b32 m0, {L_U + cw*U_SZ + 512}")
            for p in range(4):
                a(f"buffer_load_dwordx4 {V(vLIN)}, {S(R_WS,4)}, {S(sU)} offen offset:{p*1024} sc1 lds")
            a(f"s_add_u32 {S(sU)}, {S(sU)}, {UT_ROW}")
        a.label("L_h_nou2")
        a.waitall(vm=True, lg=True)
        a(f"ds_write_b32 {V(vFL)}, {V(vT)} offset:{FL_U}")
        self.stamp()
        a(f"s_mul_i32 {S(sF)}, {S(sJ)}, {80*128}")
        a(f"s_add_u32 {S(sF)}, {S(sF)}, {WS_F3}")
        a(f"v_and_b32 {V(vB)}, 15, v1")
        a(f"v_lshlrev_b32 {V(vB)}, 7, {V(vB)}")
        a(f"v_add_u32 {V(vB)}, {64*128}, {V(vB)}")
        self.poll([(vT2, vA, sF), (vC, vB, sF)], None)
        self.stamp()
        a(f"s_lshl_b32 {S(sU)}, {S(sJ)}, 5")
        a(f"s_add_u32 {S(sU)}, {S(sU)}, {S(sR)}")
        a(f"s_mul_i32 {S(sU)}, {S(sU)}, {AT_BLK}")
        a(f"s_add_u32 {S(sU)}, {S(sU)}, {WS_AT}")
        for p in range(10):
            if p % 4 == 0:
                a(f"s_mov_b32 m0, {L_U + p*1024}")
            a(f"buffer_load_dwordx4 {V(vLIN)}, {S(R_WS,4)}, {S(sU)} offen offset:{(p % 4)*1024} sc1 lds")
            if p % 4 == 3:
                a(f"s_add_u32 {S(sU)}, {S(sU)}, 4096")
        a.waitall(vm=True, lg=True)
        self.stamp()
        a("s_barrier")
        self.dump_stamps(vT)
        a(f"s_cmp_lg_u32 {S(sR)}, 0")
        a("s_cbranch_scc1 L_end")
        a(f"s_lshl_b32 {S(sT1)}, {S(sJ)}, 7")
        self.put_word(vT, sT1)
        a("s_endpgm")

    def gemm(self):
        a = self.a
        o = self.opt
        vLIN, vXS, vWS, vWP, vWO, vFL, vEP, vT, vT2, vT3, vLIN2 = 2, 3, 5, 8, 9, 10, 11, 12, 13, 14, 15
        WR = 16
        BIAS = 16
        ACC2 = 116
        FR = 116
        GWS, GWB, XA = 172, 180, 184
        HB = 196
        ACC1 = 196
        GACC = 244
        B1R = 248
        sXO, sWO, sRING, sW2, sH = sP0, sP0+1, sP0+2, sP0+3, sP0+4
        sHA = sP0+5
        sHB = sP0+9
        sODD = sP0+11
        sXL = sP0+12
        if o['prio_gemm']:
            a(f"s_setprio {o['prio_gemm']}")
        a(f"v_lshlrev_b32 {V(vLIN)}, 4, v1")
        a(f"v_add_u32 {V(vLIN2)}, 4096, {V(vLIN)}")
        a(f"v_lshrrev_b32 {V(vT)}, 3, v1")
        a(f"v_lshrrev_b32 {V(vT2)}, 4, v1")
        a(f"v_and_b32 {V(vT3)}, 7, v1")
        a(f"v_xor_b32 {V(vT3)}, {V(vT3)}, {V(vT2)}")
        a(f"v_lshlrev_b32 {V(vT3)}, 4, {V(vT3)}")
        a(f"v_mul_u32_u24 {V(vT)}, 1280, {V(vT)}")
        a(f"v_add_u32 {V(vXS)}, {V(vT)}, {V(vT3)}")
        a(f"v_xor_b32 {V(vT3)}, 64, {V(vT3)}")
        a(f"v_add_u32 {V(vXS+1)}, {V(vT)}, {V(vT3)}")
        a(f"v_add_u32 {V(vXS+1)}, {8*1280}, {V(vXS+1)}")
        for p in range(3):
            a(f"v_add_u32 {V(vT)}, {64*p}, v1")
            self.div_mod(vT2, vT3, vT, 6, 10923)
            a(f"v_and_b32 {V(vWS+p)}, 19, {V(vT2)}")
            a(f"v_lshrrev_b32 {V(vT)}, 1, {V(vT2)}")
            a(f"v_and_or_b32 {V(vWS+p)}, {V(vT)}, 4, {V(vWS+p)}")
            a(f"v_lshlrev_b32 {V(vT)}, 1, {V(vT2)}")
            a(f"v_and_or_b32 {V(vWS+p)}, {V(vT)}, 8, {V(vWS+p)}")
            a(f"v_mul_u32_u24 {V(vWS+p)}, 3072, {V(vWS+p)}")
            a(f"v_lshl_add_u32 {V(vWS+p)}, {V(vT3)}, 4, {V(vWS+p)}")
        a(f"s_lshl_b32 {S(sXO)}, {S(sR)}, 2")
        a(f"s_add_u32 {S(sXO)}, {S(sXO)}, {S(sW)}")
        a(f"s_mul_i32 {S(sXO)}, {S(sXO)}, {16*1280}")
        a(f"s_lshl_b32 {S(sWO)}, {S(sJ)}, 2")
        a(f"s_add_u32 {S(sWO)}, {S(sWO)}, {S(sW)}")
        a(f"s_mul_i32 {S(sWO)}, {S(sWO)}, 96")
        a(f"s_mul_i32 {S(sRING)}, {S(sW)}, {RING_SZ}")
        a(f"s_add_u32 {S(sRING)}, {S(sRING)}, {L_RING}")
        a(f"s_lshl_b32 {S(sXL)}, {S(sW)}, 11")
        a(f"s_add_u32 {S(sXL)}, {S(sXL)}, {L_X}")
        a(f"s_and_b32 {S(sODD)}, {S(sW)}, 1")
        vB1a, vB1b, vGa, vGb = GWB, GWB+1, GWB+2, GWB+3
        a(f"s_lshl_b32 {S(sT1)}, {S(sODD)}, 5")
        a(f"s_lshl_b32 {S(sT2)}, {S(sODD)}, 6")
        a(f"s_sub_u32 {S(sT2)}, 64, {S(sT2)}")
        a(f"v_lshrrev_b32 {V(vT2)}, 4, v1")
        a(f"v_lshl_add_u32 {V(vT)}, {V(vT2)}, 3, {S(sWO)}")
        a(f"v_add_u32 {V(vB1a)}, {S(sT1)}, {V(vT)}")
        a(f"v_add_u32 {V(vB1b)}, {S(sT2)}, {V(vT)}")
        a(f"v_and_b32 {V(vT)}, 15, v1")
        a(f"v_lshlrev_b32 {V(vT3)}, 4, {V(vT2)}")
        a(f"v_lshl_add_u32 {V(vGa)}, {V(vT)}, 6, {V(vT3)}")
        a(f"v_and_b32 {V(vGb)}, 0xff, {V(vGa)}")
        a.waitall(lg=True)
        self.srd(R_WS, P_WS, WS_SIZE)
        self.srd(R_A, P_U, 2621440)
        self.srd(R_B, P_W1, 1966080)
        self.epoch_load(vEP, sR, WS_EPR)
        a(f"global_load_dwordx2 {V(B1R,2)}, {V(vB1a)}, {S(P_B1,2)}")
        a(f"global_load_dwordx2 {V(B1R+2,2)}, {V(vB1a)}, {S(P_B1,2)} offset:32")
        a(f"global_load_dwordx2 {V(B1R+4,2)}, {V(vB1b)}, {S(P_B1,2)}")
        a(f"global_load_dwordx4 {V(GWS,4)}, {V(vGa)}, {S(P_GW,2)}")
        a(f"global_load_dwordx4 {V(GWS+4,4)}, {V(vGb)}, {S(P_GW,2)} offset:1024")
        for kk in range(10):
            for par in range(2):
                a(f"s_add_u32 m0, {S(sXL)}, {kk*8192 + par*1024 - kk*128}")
                a(f"buffer_load_dwordx4 {V(vXS+par)}, {S(R_A,4)}, {S(sXO)} offen offset:{kk*128} lds", tag='x')

        def w1_dma(s):
            for p in range(3):
                a(f"s_add_u32 m0, {S(sRING)}, {(s % 4)*3072 + p*1024}")
                a(f"buffer_load_dwordx4 {V(vWS+p)}, {S(R_B,4)}, {S(sWO)} offen lds", tag=('w1', s))
            a(f"s_add_u32 {S(sWO)}, {S(sWO)}, {32*3072}")
        for s in range(4):
            w1_dma(s)
        a(f"v_lshrrev_b32 {V(vT)}, 5, v1")
        a(f"v_lshlrev_b32 {V(vT)}, 4, {V(vT)}")
        a(f"v_bfe_u32 {V(vT3)}, v1, 2, 3")
        a(f"v_add_u32 {V(vT)}, {V(vT)}, {V(vT3)}")
        a(f"v_mul_u32_u24 {V(vT)}, 96, {V(vT)}")
        a(f"v_and_b32 {V(vT3)}, 3, v1")
        a(f"v_lshl_add_u32 {V(vT)}, {V(vT3)}, 3, {V(vT)}")
        a(f"v_add_u32 {V(vT)}, {S(sRING)}, {V(vT)}")
        a(f"v_add_u32 {V(vWP)}, {S(sT1)}, {V(vT)}")
        a(f"v_add_u32 {V(vWO)}, {S(sT2)}, {V(vT)}")
        a(f"v_and_b32 {V(vT)}, 15, v1")
        a(f"v_lshrrev_b32 {V(vT3)}, 1, {V(vT)}")
        a(f"v_xor_b32 {V(vT3)}, {V(vT3)}, {V(vT2)}")
        a(f"v_lshlrev_b32 {V(vT3)}, 4, {V(vT3)}")
        a(f"v_lshl_add_u32 {V(vT)}, {V(vT)}, 7, {V(vT3)}")
        a(f"v_xor_b32 {V(vT3)}, 64, {V(vT)}")
        for tp in range(4):
            a(f"s_xor_b32 {S(sT0)}, {S(sW)}, {tp}")
            a(f"s_lshl_b32 {S(sHA+tp)}, {S(sT0)}, 10")
            a(f"s_lshl_b32 {S(sT0)}, {S(sT0)}, 11")
            a(f"s_add_u32 {S(sT0)}, {S(sT0)}, {L_X}")
            a(f"v_add_u32 {V(XA+2*tp)}, {S(sT0)}, {V(vT)}")
            a(f"v_add_u32 {V(XA+2*tp+1)}, {S(sT0)}, {V(vT3)}")
        a(f"s_mul_i32 {S(sH)}, {S(sR)}, {48*4096}")
        a(f"s_add_u32 {S(sH)}, {S(sH)}, {WS_H}")
        a(f"s_lshr_b32 {S(sT0)}, {S(sW)}, 1")
        a(f"s_lshl_b32 {S(sT1)}, {S(sJ)}, 1")
        a(f"s_add_u32 {S(sT1)}, {S(sT1)}, {S(sT0)}")
        a(f"s_mul_i32 {S(sT1)}, {S(sT1)}, {3*4096}")
        a(f"s_add_u32 {S(sT1)}, {S(sT1)}, {S(sH)}")
        a(f"s_lshl_b32 {S(sT2)}, {S(sODD)}, 13")
        a(f"s_add_u32 {S(sT2)}, {S(sT2)}, {S(sT1)}")
        a(f"s_add_u32 {S(sT1)}, {S(sT1)}, 4096")
        a(f"s_add_u32 {S(sHB)}, {S(sHA)}, {S(sT1)}")
        a(f"s_add_u32 {S(sHB+1)}, {S(sHA+2)}, {S(sT1)}")
        for tp in range(4):
            a(f"s_add_u32 {S(sHA+tp)}, {S(sHA+tp)}, {S(sT2)}")
        a(f"s_mul_i32 {S(sT0)}, {S(sW)}, {12*4096}")
        a(f"s_add_u32 {S(sH)}, {S(sH)}, {S(sT0)}")
        a(f"s_lshl_b32 {S(sW2)}, {S(sJ)}, 2")
        a(f"s_add_u32 {S(sW2)}, {S(sW2)}, {S(sW)}")
        a(f"s_mul_i32 {S(sW2)}, {S(sW2)}, {12*5120}")
        a(f"s_add_u32 {S(sW2)}, {S(sW2)}, {WS_W2T}")
        a(f"v_mov_b32 {V(vFL)}, {L_FLAG}")
        self.epoch_to_tag(vEP)
        a("s_barrier")
        self.stamp()
        for ph in range(3):
            a(f"v_lshlrev_b32 {V(BIAS+4*ph)}, 16, {V(B1R+2*ph)}")
            a(f"v_and_b32 {V(BIAS+4*ph+1)}, 0xffff0000, {V(B1R+2*ph)}")
            a(f"v_lshlrev_b32 {V(BIAS+4*ph+2)}, 16, {V(B1R+2*ph+1)}")
            a(f"v_and_b32 {V(BIAS+4*ph+3)}, 0xffff0000, {V(B1R+2*ph+1)}")
        a(f"v_mov_b32 {V(vT)}, 1")
        a.wait(vmtag='x')
        a("s_mov_b64 exec, 1")
        a(f"ds_add_u32 {V(vFL)}, {V(vT)} offset:{FL_X}")
        a("s_mov_b64 exec, -1")
        self.spin_lds(vFL, FL_X, vT2, 4)
        self.stamp()

        def XF(b, tp): return FR + 28*b + 4*tp
        def WF(b, ph): return FR + 28*b + 16 + 4*ph
        def A1(ph, tp): return ACC1 + 4*(4*ph + tp)

        def g1_reads(s):
            b = s & 1
            kk, ks = s >> 1, s & 1
            out = []
            for ph in range(3):
                for hh in range(2):
                    ad = vWP if ph < 2 else vWO
                    off = (s % 4)*3072 + hh*768 + (32 if ph == 1 else 0)
                    out.append(f"ds_read_b64_tr_b16 {V(WF(b,ph)+2*hh,2)}, {V(ad)} offset:{off}")
            xr = [f"ds_read_b128 {V(XF(b,tp),4)}, {V(XA+2*tp+ks)} offset:{(kk % 8)*8192}" for tp in range(4)]
            return [out[0], out[1], xr[0], xr[1], out[2], out[3], xr[2], xr[3], out[4], out[5]]

        w2n = [0]

        def w2_load():
            n = w2n[0]
            st, dl = divmod(n, 5)
            r = WR + 20*(st % 5) + 4*dl
            if dl < 4:
                a(f"buffer_load_dwordx4 {V(r,4)}, {V(vLIN)}, {S(R_WS,4)}, {S(sW2)} offen offset:{dl*1024} sc1")
            else:
                a(f"buffer_load_dwordx4 {V(r,4)}, {V(vLIN2)}, {S(R_WS,4)}, {S(sW2)} offen sc1")
                a(f"s_add_u32 {S(sW2)}, {S(sW2)}, 5120")
            w2n[0] += 1

        a.wait(vmtag=('w1', 0))
        for t in g1_reads(0):
            a(t)
        for s in range(20):
            b = s & 1
            src = GWS + (4 if s >= 16 else 0)
            a(f"v_mov_b64_dpp {V(GWB,2)}, {V(src,2)} row_newbcast:{s % 16} row_mask:0xf bank_mask:0xf")
            a(f"v_mov_b64_dpp {V(GWB+2,2)}, {V(src+2,2)} row_newbcast:{s % 16} row_mask:0xf bank_mask:0xf")
            a.waitall(lg=True)
            if s == 15:
                for k in range(8):
                    a(f"v_add_u32 {V(XA+k)}, 0x10000, {V(XA+k)}")
            if s == 16:
                self.spin_lds(vFL, FL_E1, vT2, 1)
            mf = []
            for ph in range(3):
                for tp in range(4):
                    c = V(BIAS+4*ph, 4) if s == 0 else V(A1(ph, tp), 4)
                    mf.append(f"v_mfma_f32_16x16x32_bf16 {V(A1(ph,tp),4)}, {V(WF(b,ph),4)}, {V(XF(b,tp),4)}, {c}")
            c = "0" if s == 0 else V(GACC, 4)
            mf.append(f"v_mfma_f32_16x16x32_bf16 {V(GACC,4)}, {V(GWB,4)}, {V(XF(b,0),4)}, {c}")
            a(mf[0])
            if s + 4 < 20:
                w1_dma(s + 4)
            elif s >= 16:
                for k in range(o['w2pre'] // 4):
                    w2_load()
            a(mf[1])
            rd = []
            if s + 1 < 20:
                a.wait(vmtag=('w1', s + 1))
                rd = g1_reads(s + 1)
            for k in range(2, 13):
                if rd:
                    a(rd.pop(0))
                a(mf[k])
            assert not rd
        self.stamp()
        a(f"v_mov_b32 {V(vT)}, 1")
        a("s_mov_b64 exec, 1")
        a(f"ds_add_u32 {V(vFL)}, {V(vT)} offset:{FL_G1}")
        a("s_mov_b64 exec, -1")
        HP = FR

        def act(ph, tp, dst):
            r = A1(ph, tp)
            for k in range(4):
                a(f"v_max_f32 {V(r+k)}, 0, {V(r+k)}")
            a(f"v_pk_mul_f32 {V(r,2)}, {V(r,2)}, {V(r,2)}")
            a(f"v_pk_mul_f32 {V(r+2,2)}, {V(r+2,2)}, {V(r+2,2)}")
            a(f"v_cvt_pk_bf16_f32 {V(dst)}, {V(r)}, {V(r+1)}")
            a(f"v_cvt_pk_bf16_f32 {V(dst+1)}, {V(r+2)}, {V(r+3)}")
        for tp in range(4):
            act(0, tp, HP + 4*tp)
            act(1, tp, HP + 4*tp + 2)
            a(f"buffer_store_dwordx4 {V(HP+4*tp,4)}, {V(vLIN)}, {S(R_WS,4)}, {S(sHA+tp)} offen sc1", tag='h')
        for pp in range(2):
            act(2, 2*pp, HP + 16 + 4*pp)
            act(2, 2*pp+1, HP + 16 + 4*pp + 2)
            a(f"buffer_store_dwordx4 {V(HP+16+4*pp,4)}, {V(vLIN)}, {S(R_WS,4)}, {S(sHB+pp)} offen sc1", tag='h')
        while w2n[0] < 25:
            w2_load()
        vG, vOMG = GACC+1, GACC+2
        a(f"v_cvt_pk_bf16_f32 {V(GACC)}, {V(GACC)}, {V(GACC)}")
        a(f"v_and_b32 {V(GACC)}, 0xffff0000, {V(GACC)}")
        a(f"v_mul_f32 {V(GACC)}, {f32(-math.log2(math.e))}, {V(GACC)}")
        a(f"v_exp_f32 {V(GACC)}, {V(GACC)}")
        a(f"v_add_f32 {V(GACC)}, 1.0, {V(GACC)}")
        a(f"v_rcp_f32 {V(GACC)}, {V(GACC)}")
        a(f"v_cvt_pk_bf16_f32 {V(GACC)}, {V(GACC)}, {V(GACC)}")
        a(f"v_and_b32 {V(GACC)}, 0xffff0000, {V(GACC)}")
        a(f"v_mov_b32 {V(GACC+1)}, {V(GACC)}")
        a(f"v_sub_f32 {V(GACC+2)}, 1.0, {V(GACC)}")
        a(f"v_cvt_pk_bf16_f32 {V(GACC+2)}, {V(GACC+2)}, {V(GACC+2)}")
        a(f"v_and_b32 {V(GACC+2)}, 0xffff0000, {V(GACC+2)}")
        a(f"v_mov_b32 {V(GACC+3)}, {V(GACC+2)}")
        sF = sHA
        a(f"s_lshl_b32 {S(sF)}, {S(sR)}, 12")
        a(f"s_add_u32 {S(sF)}, {S(sF)}, {WS_F2}")
        a(f"s_lshl_b32 {S(sT1)}, {S(sJ)}, 2")
        a(f"s_add_u32 {S(sT1)}, {S(sT1)}, {S(sW)}")
        a(f"s_lshl_b32 {S(sT1)}, {S(sT1)}, 7")
        a(f"s_add_u32 {S(sT1)}, {S(sT1)}, {S(sF)}")
        a(f"s_lshl_b32 {S(sT2)}, {S(sW)}, 10")
        a(f"s_add_u32 {S(sF)}, {S(sF)}, {S(sT2)}")
        a(f"v_lshlrev_b32 {V(vT3)}, 7, v1")
        a.wait(vmtag='h')
        self.put_word(vT, sT1)
        self.stamp()
        self.poll([(vT2, vT3, sF)], "0xff")
        self.stamp()

        def A2(tp, dl): return ACC2 + 4*(5*tp + dl)
        def h_load(st):
            for k in range(4):
                a(f"buffer_load_dwordx4 {V(HB+16*(st % 3)+4*k,4)}, {V(vLIN)}, {S(R_WS,4)}, {S(sH)} offen offset:{k*1024} sc1")
            a(f"s_add_u32 {S(sH)}, {S(sH)}, 4096")
        for st in range(3):
            h_load(st)
        B2R = WR + 20*(7 % 5)
        B2F = WR + 20*(8 % 5)
        for st in range(12):
            a.comment(f"GEMM2 k-step {st}")
            hb = HB + 16*(st % 3)
            wr = WR + 20*(st % 5)

            def mm(tp, breg):
                for dl in range(5):
                    c = "0" if st == 0 else V(A2(tp, dl), 4)
                    a(f"v_mfma_f32_16x16x32_bf16 {V(A2(tp,dl),4)}, {V(wr+4*dl,4)}, {V(breg,4)}, {c}")
            if st % 3 != 1:
                for tp in range(4):
                    mm(tp, hb + 4*tp)
            else:
                mm(1, hb + 2)
                a(f"v_mov_b64 {V(hb+2,2)}, {V(hb+6,2)}")
                mm(3, hb + 10)
                a(f"v_mov_b64 {V(hb+10,2)}, {V(hb+14,2)}")
                mm(0, hb)
                mm(2, hb + 8)
            if st + 3 < 12:
                h_load(st + 3)
            if st + 5 < 12:
                for k in range(5):
                    w2_load()
            if st == 7:
                a(f"v_lshrrev_b32 {V(vT2)}, 4, v1")
                a(f"v_mul_u32_u24 {V(vT3)}, 40, {V(vT2)}")
                a(f"s_mul_i32 {S(sT1)}, {S(sJ)}, 160")
                a(f"v_add_u32 {V(vT)}, {S(sT1)}, {V(vT3)}")
                a(f"global_load_dwordx4 {V(B2R,4)}, {V(vT)}, {S(P_B2,2)}")
                a(f"global_load_dwordx4 {V(B2R+4,4)}, {V(vT)}, {S(P_B2,2)} offset:16")
                a(f"global_load_dwordx2 {V(B2R+8,2)}, {V(vT)}, {S(P_B2,2)} offset:32")
            if st == 10:
                for k in range(10):
                    a(f"v_lshlrev_b32 {V(B2F+2*k)}, 16, {V(B2R+k)}")
                    a(f"v_and_b32 {V(B2F+2*k+1)}, 0xffff0000, {V(B2R+k)}")
        self.stamp()
        vPW, vPR, vAR, vOW, vOR = vXS, vXS+1, vWP, vWO, vEP
        vOS = vWS
        a(f"v_add_u32 {V(vPW)}, {L_X}, {V(vLIN)}")
        a(f"s_mul_i32 {S(sT1)}, {S(sW)}, 15360")
        a(f"v_add_u32 {V(vPR)}, {S(sT1)}, {V(vPW)}")
        self.spin_lds(vFL, FL_G1, vT2, 4)
        a.fence()
        snap = a.snapshot()
        for w in range(4):
            a.restore(snap)
            if w < 3:
                a(f"s_cmp_lg_u32 {S(sW)}, {w}")
                a(f"s_cbranch_scc1 L_red{w+1}")
            for dest in range(4):
                if dest == w:
                    continue
                slot = w if w < dest else w - 1
                for dl in range(5):
                    a(f"ds_write_b128 {V(vPW)}, {V(A2(dest,dl),4)} offset:{((dest*3+slot)*5+dl)*1024}")
            for k in range(10):
                a(f"v_pk_add_f32 {V(B2F+2*k,2)}, {V(B2F+2*k,2)}, {V(A2(w,0)+2*k,2)}")
            if w < 3:
                a("s_branch L_red_done")
                a.label(f"L_red{w+1}")
        a.label("L_red_done")
        a(f"v_lshrrev_b32 {V(vT2)}, 4, v1")
        a(f"v_bfe_u32 {V(vT)}, v1, 2, 2")
        a(f"v_mad_u32_u24 {V(vT)}, {V(vT2)}, 20, {V(vT)}")
        a(f"v_lshlrev_b32 {V(vAR)}, 7, {V(vT)}")
        a(f"v_and_b32 {V(vT)}, 1, v1")
        a(f"v_lshl_add_u32 {V(vAR)}, {V(vT)}, 6, {V(vAR)}")
        a(f"v_and_b32 {V(vT)}, 2, v1")
        a(f"v_lshl_add_u32 {V(vAR)}, {V(vT)}, 2, {V(vAR)}")
        a(f"s_lshl_b32 {S(sT1)}, {S(sW)}, 4")
        a(f"s_add_u32 {S(sT1)}, {S(sT1)}, {L_U}")
        a(f"v_add_u32 {V(vAR)}, {S(sT1)}, {V(vAR)}")
        a(f"v_and_b32 {V(vT)}, 15, v1")
        a(f"v_mul_u32_u24 {V(vT)}, 160, {V(vT)}")
        a(f"v_mad_u32_u24 {V(vT)}, {V(vT2)}, 40, {V(vT)}")
        a(f"v_add_u32 {V(vOW)}, {S(sRING)}, {V(vT)}")
        a(f"v_add_u32 {V(vOR)}, {S(sRING)}, {V(vLIN)}")
        for p in range(3):
            a(f"v_add_u32 {V(vT)}, {64*p}, v1")
            self.div_mod(vOS+p, vT3, vT, 10, 6554)
            a(f"v_mul_u32_u24 {V(vOS+p)}, 1280, {V(vOS+p)}")
            a(f"v_lshl_add_u32 {V(vOS+p)}, {V(vT3)}, 4, {V(vOS+p)}")
        self.srd(R_C, P_OUT, 2621440)
        a(f"s_mul_i32 {S(sT1)}, {S(sJ)}, 160")
        a(f"s_add_u32 {S(sXO)}, {S(sXO)}, {S(sT1)}")
        a.waitall(lg=True)
        a("s_barrier")
        self.stamp()
        PR = ACC2
        AR = HB
        AF = HB + 12
        for dl in range(5):
            a(f"ds_read_b64_tr_b16 {V(AR+2*dl,2)}, {V(vAR)} offset:{dl*512}")
        for k in range(15):
            a(f"ds_read_b128 {V(PR+4*k,4)}, {V(vPR)} offset:{k*1024}")
        for k in range(10):
            a(f"v_lshlrev_b32 {V(AF+2*k)}, 16, {V(AR+k)}")
            a(f"v_and_b32 {V(AF+2*k+1)}, 0xffff0000, {V(AR+k)}")
        for k in range(10):
            a(f"v_pk_mul_f32 {V(AF+2*k,2)}, {V(AF+2*k,2)}, {V(GACC,2)}")
        for sl in range(3):
            for k in range(10):
                a(f"v_pk_add_f32 {V(B2F+2*k,2)}, {V(B2F+2*k,2)}, {V(PR+20*sl+2*k,2)}")
        for k in range(10):
            a(f"v_pk_fma_f32 {V(B2F+2*k,2)}, {V(B2F+2*k,2)}, {V(GACC+2,2)}, {V(AF+2*k,2)}")
        for k in range(10):
            a(f"v_cvt_pk_bf16_f32 {V(AR+k)}, {V(B2F+2*k)}, {V(B2F+2*k+1)}")
        for dl in range(5):
            a(f"ds_write_b64 {V(vOW)}, {V(AR+2*dl,2)} offset:{8*dl}")
        for p in range(3):
            a(f"ds_read_b128 {V(AF+4*p,4)}, {V(vOR)} offset:{p*1024}")
        for p in range(3):
            if p == 2:
                a("s_mov_b32 exec_hi, 0")
            a(f"buffer_store_dwordx4 {V(AF+4*p,4)}, {V(vOS+p)}, {S(R_C,4)}, {S(sXO)} offen")
        a("s_mov_b64 exec, -1")
        if self.prof:
            a.waitall(vm=True)
        self.stamp()
        self.dump_stamps(vT)
        a(f"s_or_b32 {S(sT1)}, {S(sJ)}, {S(sW)}")
        a(f"s_cmp_lg_u32 {S(sT1)}, 0")
        a("s_cbranch_scc1 L_end")
        a(f"s_lshl_b32 {S(sT1)}, {S(sR)}, 7")
        a(f"s_add_u32 {S(sT1)}, {S(sT1)}, {WS_EPR}")
        self.put_word(vT, sT1)
        a("s_endpgm")

    def conv(self):
        a = self.a
        o = self.opt
        vSR, vUR, vRR, vRR2, vT2R, vT3R = 2, 3, 4, 5, 6, 7
        BAND = 8
        MSK = 28
        vW0, vW1, vW2a, vW2b, vWSp, vOUT, vZ, vFL, vEP, vT, vT2, vT3 = range(32, 44)
        vI, vG, vDT, vDS = 44, 45, 46, 47
        KAF, TB2, TB3, ACC, DP, XA, UR = 48, 116, 140, 156, 188, 212, 224
        sCW, sCH, sKA, sAT, sIT = sP0, sP0+1, sP0+2, sP0+3, sP0+4
        if o['prio_conv']:
            a(f"s_setprio {o['prio_conv']}")
        a(f"s_sub_u32 {S(sCW)}, {S(sW)}, 4")
        a(f"s_and_b32 {S(sT1)}, {S(sR)}, 1")
        a(f"s_add_u32 {S(sT0)}, {S(sT1)}, {S(sCW)}")
        a(f"s_cmp_ge_u32 {S(sT0)}, 3")
        a("s_cbranch_scc1 L_end")
        a(f"s_lshr_b32 {S(sCH)}, {S(sR)}, 1")
        a(f"s_mul_i32 {S(sCH)}, {S(sCH)}, 5")
        a(f"s_mul_i32 {S(sT1)}, {S(sT1)}, 3")
        a(f"s_add_u32 {S(sCH)}, {S(sCH)}, {S(sT1)}")
        a(f"s_add_u32 {S(sCH)}, {S(sCH)}, {S(sCW)}")
        a(f"s_lshl_b32 {S(sAT)}, {S(sCH)}, 7")
        a(f"s_mul_i32 {S(sT0)}, {S(sJ)}, {32*AT_BLK}")
        a(f"s_add_u32 {S(sAT)}, {S(sAT)}, {S(sT0)}")
        a(f"s_add_u32 {S(sAT)}, {S(sAT)}, {WS_AT}")
        a(f"s_mul_i32 {S(sT0)}, {S(sJ)}, 80")
        a(f"s_add_u32 {S(sCH)}, {S(sCH)}, {S(sT0)}")
        a(f"s_mul_i32 {S(sKA)}, {S(sCW)}, {KA_SZ}")
        a(f"s_mul_i32 {S(sT0)}, {S(sCH)}, 384")
        a(f"v_lshl_add_u32 {V(vT)}, v1, 2, {S(sT0)}")
        a(f"v_lshl_add_u32 {V(vT2)}, v1, 1, {S(sT0)}")
        a(f"s_lshl_b32 {S(sT0)}, {S(sCH)}, 1")
        a(f"v_mov_b32 {V(vT3)}, {S(sT0)}")
        P01, P2 = 48, 54
        CUR = 60
        Y, Q, TM = 66, 68, 70
        SE = 72
        CV = 88
        AR1, AI1, X0, X1, X2 = 92, 93, 94, 96, 97
        ONE = 98
        BQ, AP = 100, 116
        DK = DP
        a.waitall(lg=True)
        self.srd(R_WS, P_WS, WS_SIZE)
        self.epoch_load(vEP, sJ, WS_EPC)
        a(f"global_load_ushort {V(vDT)}, {V(vT3)}, {S(P_LDT,2)}")
        a(f"global_load_ushort {V(vDS)}, {V(vT3)}, {S(P_DSK,2)}")
        for k, p in enumerate((P_ARE, P_AIM, P_BRE, P_BIM, P_CRE, P_CIM)):
            a(f"global_load_dword {V(P01+k)}, {V(vT)}, {S(p,2)}")
        for k, p in enumerate((P_ARE, P_AIM, P_BRE, P_BIM, P_CRE, P_CIM)):
            a(f"global_load_ushort {V(P2+k)}, {V(vT2)}, {S(p,2)} offset:256")
        a(f"v_and_b32 {V(vI)}, 15, v1")
        a(f"v_lshrrev_b32 {V(vG)}, 4, v1")
        a(f"v_lshlrev_b32 {V(vT3)}, 3, {V(vG)}")
        bands = [(1, 11), (2, 6), (1, 3), (3, 5), (4, 4)]
        for k, (w, kap) in enumerate(bands + [(None, 12)]):
            ones = 3 if w is None else (1 << (2*w+1)) - 1
            a(f"s_mov_b32 {S(sT0)}, {hex(ones << kap)}")
            a(f"v_lshlrev_b32_e64 {V(vT)}, {V(vI)}, {S(sT0)}")
            a(f"v_lshrrev_b32 {V(vT)}, {V(vT3)}, {V(vT)}")
            for j in range(4):
                r = BAND + 4*k + j
                a(f"v_bfe_u32 {V(r)}, {V(vT)}, {2*j}, 2")
                a(f"v_mul_u32_u24 {V(r)}, 0x8001, {V(r)}")
                a(f"v_and_b32 {V(r)}, 0x10001, {V(r)}")
                a(f"v_mul_u32_u24 {V(r)}, {'0xffff' if w is None else '0x3f80'}, {V(r)}")
        B4, B8, B12, B8w, B16w = BAND, BAND+4, BAND+8, BAND+12, BAND+16
        a(f"v_mul_u32_u24 {V(vSR)}, {ROWB}, {V(vI)}")
        a(f"v_lshl_add_u32 {V(vSR)}, {V(vG)}, 4, {V(vSR)}")
        a(f"v_add_u32 {V(vSR)}, {S(sKA)}, {V(vSR)}")
        a(f"v_lshlrev_b32 {V(vUR)}, 5, {V(vI)}")
        a(f"v_lshl_add_u32 {V(vUR)}, {V(vG)}, 4, {V(vUR)}")
        a(f"s_add_u32 {S(sT0)}, {S(sKA)}, {L_U}")
        a(f"v_add_u32 {V(vUR)}, {S(sT0)}, {V(vUR)}")
        a(f"v_sub_u32 {V(vT)}, {V(vT3)}, {V(vI)}")
        a(f"v_and_b32 {V(vT2)}, 1, v1")
        a(f"v_mul_u32_u24 {V(vT2)}, {K_RB + 2 - K_RA}, {V(vT2)}")
        a(f"v_lshlrev_b32 {V(vRR)}, 1, {V(vT)}")
        a(f"v_sub_u32 {V(vRR)}, {V(vRR)}, {V(vT2)}")
        a(f"s_add_u32 {S(sT0)}, {S(sKA)}, {K_RB + 32}")
        a(f"v_add_u32 {V(vRR)}, {S(sT0)}, {V(vRR)}")
        a(f"v_add_u32 {V(vRR2)}, 1024, {V(vRR)}")
        a(f"v_lshlrev_b32 {V(vT)}, 2, {V(vG)}")
        a(f"v_sub_u32 {V(vT)}, {V(vI)}, {V(vT)}")
        a(f"s_add_u32 {S(sT0)}, {S(sKA)}, {K_N2 + 104}")
        a(f"v_lshl_add_u32 {V(vT2R)}, {V(vT)}, 3, {S(sT0)}")
        a(f"s_add_u32 {S(sT0)}, {S(sKA)}, {K_N3 + 52}")
        a(f"v_lshl_add_u32 {V(vT3R)}, {V(vT)}, 2, {S(sT0)}")
        a(f"v_lshrrev_b32 {V(vT)}, 1, {V(vG)}")
        a(f"v_lshlrev_b32 {V(vT)}, 8, {V(vT)}")
        a(f"v_lshl_add_u32 {V(vT)}, {V(vI)}, 4, {V(vT)}")
        a(f"v_and_b32 {V(vT2)}, 1, {V(vG)}")
        a(f"v_lshl_add_u32 {V(vT)}, {V(vT2)}, 3, {V(vT)}")
        a(f"s_add_u32 {S(sT0)}, {S(sKA)}, {2*539}")
        a(f"v_sub_u32 {V(vW0)}, {S(sT0)}, {V(vT)}")
        a(f"v_lshlrev_b32 {V(vT)}, 8, {V(vT2)}")
        a(f"v_lshl_add_u32 {V(vT)}, {V(vI)}, 4, {V(vT)}")
        a(f"s_add_u32 {S(sT0)}, {S(sKA)}, {2*278}")
        a(f"v_sub_u32 {V(vW1)}, {S(sT0)}, {V(vT)}")
        a(f"v_lshlrev_b32 {V(vT)}, 7, {V(vT2)}")
        a(f"v_add_u32 {V(vT)}, {S(sKA)}, {V(vT)}")
        a(f"v_lshl_add_u32 {V(vW2a)}, {V(vI)}, 1, {V(vT)}")
        a(f"v_add_u32 {V(vW2a)}, {K_N3 + 64}, {V(vW2a)}")
        a(f"v_add_u32 {V(vW2b)}, 32, {V(vW2a)}")
        a("s_mov_b32 exec_hi, 0")
        a(f"v_lshl_add_u32 {V(vW2a)}, {V(vI)}, 2, {V(vT)}")
        a(f"v_add_u32 {V(vW2a)}, {K_N2 + 128}, {V(vW2a)}")
        a(f"v_add_u32 {V(vW2b)}, 2, {V(vW2a)}")
        a("s_mov_b64 exec, -1")
        a(f"s_add_u32 {S(sT0)}, {S(sKA)}, {2*(543-514)}")
        a(f"v_mov_b32 {V(vWSp)}, {S(sT0)}")
        a(f"s_add_u32 {S(sT0)}, {S(sKA)}, {2*543}")
        a(f"v_writelane_b32 {V(vWSp)}, {S(sT0)}, 32")
        a(f"s_add_u32 {S(sT0)}, {S(sKA)}, {2*(543-257)}")
        a(f"v_writelane_b32 {V(vWSp)}, {S(sT0)}, 63")
        a(f"v_lshrrev_b32 {V(vT)}, 1, {V(vG)}")
        a(f"v_lshlrev_b32 {V(vT)}, 2, {V(vT)}")
        a(f"v_bfe_u32 {V(vT3)}, v1, 2, 2")
        a(f"v_add_u32 {V(vT)}, {V(vT)}, {V(vT3)}")
        a(f"v_mul_u32_u24 {V(vOUT)}, {AT_BLK}, {V(vT)}")
        a(f"v_lshl_add_u32 {V(vOUT)}, {V(vT2)}, 6, {V(vOUT)}")
        a(f"v_and_b32 {V(vT)}, 3, v1")
        a(f"v_lshl_add_u32 {V(vOUT)}, {V(vT)}, 4, {V(vOUT)}")
        a(f"v_lshl_add_u32 {V(vZ)}, v1, 4, {S(sKA)}")
        a(f"v_mov_b32 {V(vFL)}, {L_FLAG}")
        a(f"v_mov_b32 {V(ONE)}, 0x3f80")
        for k in range(12):
            a(f"v_mov_b32 {V(DK+k)}, 0")
        a(f"s_mov_b32 m0, {S(sKA)}")
        self.epoch_to_tag(vEP)
        a("s_barrier")
        self.stamp()
        L2E = math.log2(math.e)
        hi = struct.unpack("<f", struct.pack("<f", L2E))[0]
        a(f"v_lshlrev_b32 {V(vDT)}, 16, {V(vDT)}")
        a(f"s_mov_b32 {S(sT0)}, {f32(hi)}")
        a(f"v_mul_f32 {V(vT)}, {S(sT0)}, {V(vDT)}")
        a(f"v_fma_f32 {V(vT2)}, {V(vDT)}, {S(sT0)}, -{V(vT)}")
        a(f"v_fmac_f32 {V(vT2)}, {f32(L2E - hi)}, {V(vDT)}")
        a(f"v_exp_f32 {V(vT)}, {V(vT)}")
        a(f"v_mul_f32 {V(vT2)}, {f32(math.log(2.0))}, {V(vT2)}")
        a(f"v_fmac_f32 {V(vT)}, {V(vT)}, {V(vT2)}")
        a(f"v_cvt_pk_bf16_f32 {V(vDT)}, {V(vT)}, {V(vT)}")
        a(f"v_and_b32 {V(vDT)}, 0xffff0000, {V(vDT)}")
        a(f"v_lshlrev_b32 {V(vDS)}, 16, {V(vDS)}")

        def E(e): return SE + 2*(e-1)

        def cm_a(x, w):
            a(f"v_pk_mul_f32 {V(TM,2)}, {V(x,2)}, {V(w,2)} op_sel_hi:[1,0]")

        def cm_b(d, x, w):
            a(f"v_pk_fma_f32 {V(d,2)}, {V(x,2)}, {V(w,2)}, {V(TM,2)} op_sel:[1,1,0] op_sel_hi:[0,1,1] neg_lo:[0,1,0]")

        def setup():
            for k in range(6):
                a(f"v_lshlrev_b32_e64 {V(CUR+k)}, 16, {V(P01+k)}")
                a(f"v_alignbit_b32 {V(P01+k)}, {V(P2+k)}, {V(P01+k)}, 16")
            a(f"v_pk_mul_f32 {V(AR1,2)}, {V(CUR,2)}, {V(vDT,2)} op_sel_hi:[1,0]")
            a(f"v_pk_mul_f32 {V(CUR+2,2)}, {V(CUR+2,2)}, {V(vDT,2)} op_sel_hi:[1,0]")
            for m, d in ((8, E(8)), (1, E(1)), (128, Y)):
                a(f"v_mul_f32 {V(X1)}, {f32(m/(2*math.pi))}, {V(AI1)}")
                a(f"v_mul_f32 {V(X0)}, {f32(m*L2E)}, {V(AR1)}")
                a(f"v_fract_f32_e64 {V(X1)}, {V(X1)}")
                a(f"v_exp_f32_e64 {V(X0)}, {V(X0)}")
                a(f"v_cos_f32_e64 {V(d)}, {V(X1)}")
                a(f"v_sin_f32_e64 {V(d+1)}, {V(X1)}")
                if m == 8:
                    cm_a(CUR+2, CUR+4)
                elif m == 1:
                    cm_b(Q, CUR+2, CUR+4)
                else:
                    a(f"v_mov_b32_e64 {V(X2)}, 0")
                a(f"v_pk_mul_f32 {V(d,2)}, {V(d,2)}, {V(X0,2)} op_sel_hi:[1,0]")

        pend = []
        cvn = [0]

        def cvt(row, x, neg=False):
            c = CV + cvn[0] % 4
            cvn[0] += 1
            a(f"v_cvt_pk_bf16_f32 {V(c)}, {V(x)}, {'-' if neg else ''}{V(x+1)}")
            pend.append((row, c))

        def wr(keep):
            while len(pend) > keep:
                row, c = pend.pop(0)
                a(f"ds_write_addtid_b32 {V(c)} offset:{row*ROWB}")

        def reads(dst):
            for sg in range(4):
                a(f"ds_read_b128 {V(dst+4*sg,4)}, {V(vSR)} offset:{64*sg}")

        def kmm(t, sg):
            a(f"v_mfma_f32_16x16x32_bf16 {V(DK+4*t,4)}, {V(AP+4*sg,4)}, {V(BQ+4*sg,4)}, {V(DK+4*t,4)}")

        setup()
        a(f"s_mov_b32 {S(sIT)}, 0")
        a.waitall(vm=True, lg=True)
        a.fence()
        a.align(3)
        a.label("L_kgen")
        for c in range(16):
            if c < 15:
                cm_a(Q, E(8))
            else:
                cm_a(E(1), E(1))
            cvt(c, Q, neg=True)
            if c < 15:
                cm_b(Q, Q, E(8))
            else:
                cm_b(E(2), E(1), E(1))
            wr(1)
        cm_a(E(2), E(1))
        wr(0)
        reads(BQ)
        cm_b(E(3), E(2), E(1))
        todo = [(4, 2, 2), (5, 4, 1), (6, 4, 2), (7, 4, 3)]
        order = [1, 2, 3, 8, 4, 5, 6, 7]
        for k, e in enumerate(order):
            if k < 4:
                cm_a(E(todo[k][1]), E(todo[k][2]))
                cvt(e-1, E(e))
                cm_b(E(todo[k][0]), E(todo[k][1]), E(todo[k][2]))
            else:
                e2 = order[k-4]
                cm_a(E(e2), Y)
                cvt(e-1, E(e))
                cm_b(E(e2), E(e2), Y)
            wr(1)
        for k, e in enumerate(order):
            if k < 4:
                e2 = order[k+4]
                cm_a(E(e2), Y)
                cvt(8+e-1, E(e))
                cm_b(E(e2), E(e2), Y)
            else:
                e2 = (2, 8, 4, 6)[k-4]
                cm_a(E(e2), Y)
                cvt(8+e-1, E(e))
                cm_b(E(e2), E(e2), Y)
            wr(1)
        cm_a(E(2), Y)
        wr(0)
        reads(AP)
        cvt(0, E(2))
        cm_b(E(2), E(2), Y)
        a(f"ds_write_addtid_b32 {V(ONE)} offset:{8*ROWB}")
        for e in (8, 4, 6):
            cm_a(E(e), Y)
            cvt(e//2-1, E(e))
            cm_b(E(e), E(e), Y)
            wr(1)
        cvt(4, E(2))
        kmm(0, 0)
        wr(1)
        cvt(4+2, E(6))
        kmm(0, 1)
        wr(1)
        for k, e in enumerate((8, 4)):
            cm_a(E(e), Y)
            cvt(4+e//2-1, E(e))
            cm_b(E(e), E(e), Y)
            kmm(0, 2+k)
            wr(1)
        cm_a(E(8), Y)
        wr(0)
        reads(AP)
        first = True
        n = 0
        for r in range(4, 16):
            for e in ((8, 4) if r < 8 else (8,)):
                row = 2*(r-4) + e//4 - 1 if r < 8 else r
                last = (r == 15) or (r == 7 and e == 4)
                if not last and not first:
                    cm_a(E(e), Y)
                first = False
                cvt(row, E(e))
                if not last:
                    cm_b(E(e), E(e), Y)
                wr(1)
                if 5 <= n < 9:
                    kmm(1, n-5)
                n += 1
        a(f"s_add_u32 {S(sIT)}, {S(sIT)}, 1")
        a(f"s_cmp_lt_u32 {S(sIT)}, 3")
        wr(0)
        reads(AP)
        setup()
        for sg in range(4):
            kmm(2, sg)
        assert not a.lg
        a("s_cbranch_scc1 L_kgen")
        self.stamp()
        Z = 72
        for k in range(4):
            a(f"v_mov_b32 {V(Z+k)}, 0")
        for k in range(4):
            a(f"ds_write_b128 {V(vZ)}, {V(Z,4)} offset:{k*1024}")
        D0, D1, D2 = DK, DK+4, DK+8
        C = 76
        a(f"v_cvt_pk_bf16_f32 {V(C)}, {V(D0+3)}, {V(D0+2)}")
        a(f"v_cvt_pk_bf16_f32 {V(C+1)}, {V(D0+1)}, {V(D0)}")
        a(f"v_cvt_pk_bf16_f32 {V(C+2)}, {V(D0+2)}, {V(D0+1)}")
        a(f"v_cvt_pk_bf16_f32 {V(C+3)}, {V(D1+3)}, {V(D1+3)}")
        a(f"v_cvt_pk_bf16_f32 {V(C+4)}, {V(D1+3)}, {V(D1+2)}")
        a(f"v_cvt_pk_bf16_f32 {V(C+5)}, {V(D1+1)}, {V(D1+1)}")
        a(f"v_cvt_pk_bf16_f32 {V(C+6)}, {V(D1+1)}, {V(D1)}")
        a(f"v_cvt_pk_bf16_f32 {V(C+7)}, {V(D1+2)}, {V(D1+1)}")
        a(f"v_add_f32 {V(C+10)}, {V(D1)}, {V(vDS)}")
        a(f"ds_write_b64 {V(vW0)}, {V(C,2)} offset:{K_RB + 2}")
        a(f"ds_write_b16 {V(vW0)}, {V(C)}")
        a(f"ds_write_b32 {V(vW0)}, {V(C+2)} offset:2")
        a(f"ds_write_b16_d16_hi {V(vW0)}, {V(C+1)} offset:6")
        a(f"v_cvt_pk_bf16_f32 {V(C+10)}, {V(C+10)}, {V(C+10)}")
        a(f"v_cvt_pk_bf16_f32 {V(C+8)}, {V(D2)}, {V(D2+1)}")
        a(f"v_cvt_pk_bf16_f32 {V(C+9)}, {V(D2+2)}, {V(D2+3)}")
        a("s_mov_b32 exec_hi, 0")
        a(f"v_mov_b32 {V(C+10)}, {V(C+3)}")
        a(f"v_add_u32 {V(vT)}, {K_RB + 4}, {V(vW1)}")
        a(f"ds_write2_b32 {V(vW1)}, {V(C+3)}, {V(C+4)} offset0:0 offset1:1")
        a(f"ds_write2_b32 {V(vW1)}, {V(C+5)}, {V(C+6)} offset0:2 offset1:3")
        a(f"ds_write_b16 {V(vW1)}, {V(C+3)} offset:{K_RB + 2}")
        a(f"ds_write2_b32 {V(vT)}, {V(C+3)}, {V(C+7)} offset0:0 offset1:1")
        a(f"ds_write_b32 {V(vT)}, {V(C+5)} offset:8")
        a(f"ds_write_b16_d16_hi {V(vT)}, {V(C+6)} offset:12")
        a("s_mov_b32 exec_lo, 0")
        a("s_mov_b32 exec_hi, 0x80000000")
        a(f"v_mov_b32 {V(C+10)}, {V(C)}")
        a("s_mov_b32 exec_lo, 0x80000000")
        a("s_mov_b32 exec_hi, 0x80000001")
        a(f"ds_write_b16 {V(vWSp)}, {V(C+10)}")
        a(f"ds_write_b16 {V(vWSp)}, {V(C+10)} offset:{K_RB + 2}")
        a("s_mov_b64 exec, -1")
        a(f"ds_write_b16 {V(vW2a)}, {V(C+8)}")
        a(f"ds_write_b16_d16_hi {V(vW2b)}, {V(C+8)}")
        a(f"ds_write_b16 {V(vW2a)}, {V(C+9)} offset:64")
        a(f"ds_write_b16_d16_hi {V(vW2b)}, {V(C+9)} offset:64")
        a(f"v_mov_b32 {V(vT)}, {S(sKA)}")
        a.waitall(lg=True)
        for dp in list(range(7, -1, -1)) + list(range(15, 7, -1)) + [16]:
            for h in range(2):
                if dp == 0:
                    ad, off = vRR2, 2*h
                else:
                    ad, off = vRR, 16*(16-dp) + 2*h
                a(f"ds_read2_b32 {V(KAF+4*dp+2*h,2)}, {V(ad)} offset0:{off} offset1:{off+1}")
        a(f"ds_read_u16 {V(vT2)}, {V(vT)} offset:{K_N2 + 382}")
        for dI in (2, 3, 4):
            for h in range(2):
                off = 16*dI - 30 - 2*h
                a(f"ds_read2_b64 {V(TB2+8*(dI-2)+4*h,4)}, {V(vT2R)} offset0:{off} offset1:{off+1}")
        for dI in (4, 5, 6, 7):
            for h in range(2):
                off = 16*(dI-4) + 2*h
                a(f"ds_read2_b32 {V(TB3+4*(dI-4)+2*h,2)}, {V(vT3R)} offset0:{off} offset1:{off+1}")
        a(f"v_lshl_or_b32 {V(vT2)}, {V(vT2)}, 16, {V(vT2)}")
        for k in range(4):
            a(f"v_and_b32 {V(MSK+k)}, {V(MSK+k)}, {V(vT2)}")
        self.stamp()
        self.spin_lds(vFL, FL_U, vT2, 1)
        self.stamp()
        NU = 6
        U2 = UR + 4*NU
        qs = list(range(-7, 57))
        started = set()

        def U(q): return UR + 4*((q + 7) % NU)

        def uread(q):
            a(f"ds_read_b128 {V(U(q),4)}, {V(vUR)} offset:{480 + 64*q}")

        def accmm(I, A, B):
            c = V(ACC+4*I, 4) if I in started else "0"
            started.add(I)
            a(f"v_mfma_f32_16x16x32_bf16 {V(ACC+4*I,4)}, {V(A,4)}, {V(B,4)}, {c}")
        late = []
        for q in qs[:NU-1]:
            uread(q)
        for q in qs:
            if q + NU - 1 <= 56:
                uread(q + NU - 1)
            if (q + 4) % 8 == 0 and 0 <= (q+4)//8 <= 5:
                a(f"ds_read_b128 {V(U2,4)}, {V(vUR)} offset:{480 + 64*(q+4) - 16}")
            f = (-q) % 8
            Ip = q // 8
            if q >= 0 and f == 0 and Ip <= 5:
                s1 = [(0, U(q), B4), (1, U(q), B8), (2, U(q), B12), (3, U2, B8)]
                if Ip <= 3:
                    s1 += [(4, U(q), B8w), (5, U2, B16w)]
                for (k, uu, bb) in s1:
                    a(f"v_mfma_f32_16x16x32_bf16 {V(DP+4*k,4)}, {V(uu,4)}, {V(bb,4)}, 0")

                def pack2(h):
                    for n, (r, k) in enumerate(((2*h+1, 0), (2*h+1, 2), (2*h, 0), (2*h, 2))):
                        a(f"v_cvt_pk_bf16_f32 {V(XA+4*h+n)}, {V(DP+4*k+r)}, {V(DP+4*(k+1)+r)}")

                def pack3():
                    for n, r in enumerate((3, 2, 1, 0)):
                        a(f"v_cvt_pk_bf16_f32 {V(XA+8+n)}, {V(DP+16+r)}, {V(DP+20+r)}")

                def st2(Ip, h):
                    for dI in (2, 3, 4):
                        if Ip + dI <= 7:
                            accmm(Ip+dI, XA+4*h, TB2+8*(dI-2)+4*h)

                def st3(Ip):
                    for dI in (4, 5, 6, 7):
                        if Ip + dI <= 7:
                            accmm(Ip+dI, XA+8, TB3+4*(dI-4))
                late.append((q+1, lambda: pack2(0)))
                late.append((q+2, lambda: pack2(1)))
                late.append((q+2, lambda Ip=Ip: st2(Ip, 0)))
                late.append((q+3, lambda Ip=Ip: st2(Ip, 1)))
                if Ip <= 3:
                    late.append((q+3, pack3))
                    late.append((q+4, lambda Ip=Ip: st3(Ip)))
            for dp in ([f, f+8] + ([16] if f == 0 else [])):
                I = (q + dp)//8
                if 0 <= I <= 7:
                    accmm(I, KAF+4*dp, U(q))
            if q >= 0 and f == 0 and Ip <= 3:
                accmm(Ip+4, MSK, U(q))
            if q >= 0 and f == 0 and Ip % 2 == 1:
                def out(I=Ip-1):
                    r = ACC + 4*I
                    a(f"v_cvt_pk_bf16_f32 {V(r)}, {V(r)}, {V(r+1)}")
                    a(f"v_cvt_pk_bf16_f32 {V(r+1)}, {V(r+2)}, {V(r+3)}")
                    a(f"v_cvt_pk_bf16_f32 {V(r+2)}, {V(r+4)}, {V(r+5)}")
                    a(f"v_cvt_pk_bf16_f32 {V(r+3)}, {V(r+6)}, {V(r+7)}")

                def out2(I=Ip-1):
                    r = ACC + 4*I
                    a(f"v_permlane32_swap_b32 {V(r)}, {V(r+2)}")
                    a(f"v_permlane32_swap_b32 {V(r+1)}, {V(r+3)}")
                    a(f"buffer_store_dwordx4 {V(r,4)}, {V(vOUT)}, {S(R_WS,4)}, {S(sAT)} offen sc1")
                    a(f"s_add_u32 {S(sAT)}, {S(sAT)}, {8*AT_BLK}")
                late.append((q+5, out))
                late.append((q+6, out2))
            late.sort(key=lambda x: x[0])
            while late and (late[0][0] <= q or q == 56):
                late.pop(0)[1]()
        self.stamp()
        a(f"s_lshl_b32 {S(sT1)}, {S(sCH)}, 7")
        a(f"s_add_u32 {S(sT1)}, {S(sT1)}, {WS_F3}")
        a.waitall(vm=True)
        self.put_word(vT, sT1)
        self.stamp()
        self.dump_stamps(vT)
        a("s_endpgm")


if __name__ == "__main__":
    for e in range(320):
        assert (e*6554) >> 16 == e//10
    for e in range(192):
        assert (e*10923) >> 16 == e//6
    out = sys.argv[1] if len(sys.argv) > 1 else f"cdna_kernels/{NAME}.s"
    opts = {}
    for x in sys.argv[2:]:
        k, v = x.split("=")
        opts[k] = int(v)
    g = Gen(**opts)
    t = g.build()
    open(out, "w").write(t)
    print("written", out, "lines", t.count("\n"), "nop states", g.a.nops)
```

```python
import sys
import math
import struct
from asmlib import Asm, V, S

NAME = "gated_mix__ssm_conv_s4__dense_activation_squared_relu__prompt"
KERNEL = NAME + "_kernel"

WS_EPC = 0
WS_EPR = 1024
WS_F1 = 8192
WS_F2 = 65536
WS_F3 = 196608
WS_PROF = 0xF00000
WS_UT = 0x80000
UT_ROW = 4224
WS_AT = 0x380000
AT_BLK = 10368
WS_W2T = 0x680000
WS_H = 0x880000
WS_SIZE = 0x1000000
L_KA = 0
KA_SZ = 4608
L_U = 13824
U_SZ = 4608
L_FLAG = 27648
L_X = 28672
L_RING = 110592
RING_SZ = 12288
LDS_SIZE = 163840
FL_X, FL_E1, FL_U, FL_G1 = 0, 4, 8, 12
ROWB = 288
K_RA, K_RB, K_N2, K_N3 = 0, 1216, 2368, 2880

SPIN_LDS = 400000
SPIN_GLB = 40000

P_U, P_ARE, P_AIM, P_BRE, P_BIM, P_CRE, P_CIM, P_LDT = 4, 6, 8, 10, 12, 14, 16, 18
P_DSK, P_BX, P_W1, P_B1, P_W2, P_B2, P_GW, P_OUT = 20, 22, 24, 26, 28, 30, 32, 34
P_DBG, P_WS = 36, 38
sW, sR, sJ, sTAG = 40, 41, 42, 43
sT0, sT1, sT2, sT3, sCNT = 44, 45, 46, 47, 48
R_WS, R_A, R_B, R_C = 52, 56, 60, 64
sP0 = 68
sSTAMP = 84


def f32(x):
    return "0x%08x" % struct.unpack("<I", struct.pack("<f", x))[0]


class Gen:
    def __init__(self, prof=False, **opt):
        self.a = Asm()
        self.prof = prof
        self.opt = dict(w2pre=8, prio_gemm=0, prio_conv=1, prio_help=3, wb=8, noconv=0, dbgrole=0)
        self.opt.update(opt)
        self.nstamp = 0
        self.names = {}
        self.role = 'all'

    def srd(self, dst, ptr, size):
        a = self.a
        a(f"s_mov_b32 {S(dst)}, {S(ptr)}")
        a(f"s_mov_b32 {S(dst+1)}, {S(ptr+1)}")
        a(f"s_mov_b32 {S(dst+2)}, {hex(size)}")
        a(f"s_mov_b32 {S(dst+3)}, 0x20000")

    def stamp(self, name=None, clk=False):
        if not self.prof:
            return
        a = self.a
        a(f"{'s_memtime' if clk else 's_memrealtime'} {S(sSTAMP, 2)}")
        a(f"v_writelane_b32 v255, {S(sSTAMP)}, {self.nstamp}")
        self.names.setdefault(self.role, []).append(name or f"s{self.nstamp}")
        self.nstamp += 1

    def dump_stamps(self, vt):
        if not self.prof:
            return
        a = self.a
        self.stamp("clk1", clk=True)
        a(f"v_writelane_b32 v255, {S(sSTAMP+2)}, 0")
        a(f"v_writelane_b32 v255, {S(sSTAMP+4)}, 1")
        a(f"s_lshl_b32 {S(sT0)}, s2, 3")
        a(f"s_add_u32 {S(sT0)}, {S(sT0)}, {S(sW)}")
        a(f"s_lshl_b32 {S(sT0)}, {S(sT0)}, 8")
        a(f"s_add_u32 {S(sT0)}, {S(sT0)}, {WS_PROF}")
        a(f"v_lshlrev_b32 {V(vt)}, 2, v1")
        a(f"buffer_store_dword v255, {V(vt)}, {S(R_WS,4)}, {S(sT0)} offen")
        if self.opt['dbgrole'] == {'gemm': 1, 'conv': 2, 'help': 3}[self.role]:
            l = a.newlabel("nodbg")
            a(f"s_and_b32 {S(sT0)}, {S(sW)}, 3")
            a(f"s_cmp_lg_u32 {S(sT0)}, {3 if self.role == 'help' else 0}")
            a(f"s_cbranch_scc1 {l}")
            a(f"s_not_b32 {S(sT0)}, {S(sSTAMP+2)}")
            a(f"v_writelane_b32 v255, {S(sT0)}, 1")
            self.srd(R_A, P_DBG, 256)
            if self.role == 'gemm':
                a("v_readlane_b32 s90, v255, 16")
                a("v_writelane_b32 v255, s90, 12")
            a("s_mov_b64 exec, 0xffff")
            a(f"buffer_atomic_umax v255, {V(vt)}, {S(R_A,4)}, 0 offen")
            a("s_mov_b64 exec, -1")
            a.label(l)

    def spin_lds(self, vaddr, off, vt, target):
        a = self.a
        a.waitall(lg=True)
        l, d = a.newlabel("spin"), a.newlabel("spun")
        a(f"s_mov_b32 {S(sCNT)}, 0")
        a.fence()
        a.label(l)
        a(f"ds_read_b32 {V(vt)}, {V(vaddr)} offset:{off}")
        a(f"s_add_u32 {S(sCNT)}, {S(sCNT)}, 1")
        a(f"v_readfirstlane_b32 {S(sT0)}, {V(vt)}")
        a(f"s_cmp_ge_u32 {S(sT0)}, {target}")
        a(f"s_cbranch_scc1 {d}")
        a(f"s_cmp_lt_u32 {S(sCNT)}, {SPIN_LDS}")
        a(f"s_cbranch_scc1 {l}")
        a.label(d)

    def poll(self, loads, execmask):
        a = self.a
        l, d = a.newlabel("poll"), a.newlabel("polled")
        a(f"s_mov_b32 {S(sCNT)}, 0")
        if execmask is not None:
            a("s_mov_b32 exec_hi, 0" if execmask == "0xffffffff" else f"s_mov_b64 exec, {execmask}")
        a.fence()
        a.label(l)
        for (vd, vo, so) in loads:
            a(f"buffer_load_dword {V(vd)}, {V(vo)}, {S(R_WS,4)}, {S(so)} offen sc1")
        a(f"s_add_u32 {S(sCNT)}, {S(sCNT)}, 1")
        a.waitall(vm=True)
        if len(loads) == 2:
            a(f"v_xor_b32 {V(loads[0][0])}, {S(sTAG)}, {V(loads[0][0])}")
            a(f"v_xor_b32 {V(loads[1][0])}, {S(sTAG)}, {V(loads[1][0])}")
            a(f"v_or_b32 {V(loads[0][0])}, {V(loads[0][0])}, {V(loads[1][0])}")
            a(f"v_cmp_ne_u32 vcc, 0, {V(loads[0][0])}")
        else:
            a(f"v_cmp_ne_u32 vcc, {S(sTAG)}, {V(loads[0][0])}")
        a(f"s_cmp_lt_u32 {S(sCNT)}, {SPIN_GLB}")
        a("s_nop 3")
        a(f"s_cbranch_vccz {d}")
        a(f"s_cbranch_scc1 {l}")
        a.label(d)
        if execmask is not None:
            a("s_mov_b64 exec, -1")

    def epoch_load(self, vt, grp, base):
        a = self.a
        a(f"s_lshl_b32 {S(sT0)}, {S(grp)}, 7")
        if base:
            a(f"s_add_u32 {S(sT0)}, {S(sT0)}, {base}")
        a(f"buffer_load_dword {V(vt)}, off, {S(R_WS,4)}, {S(sT0)} sc1")

    def epoch_to_tag(self, vt):
        a = self.a
        a(f"v_readfirstlane_b32 {S(sTAG)}, {V(vt)}")
        a(f"s_mul_i32 {S(sTAG)}, {S(sTAG)}, 1664525")
        a(f"s_add_u32 {S(sTAG)}, {S(sTAG)}, 1013904223")

    def put_word(self, vt, soff):
        a = self.a
        a(f"v_mov_b32 {V(vt)}, {S(sTAG)}")
        a("s_mov_b64 exec, 1")
        a(f"buffer_store_dword {V(vt)}, off, {S(R_WS,4)}, {S(soff)} sc1")
        a("s_mov_b64 exec, -1")

    def div_mod(self, q, m, e, d, magic):
        a = self.a
        a(f"v_mul_u32_u24 {V(q)}, {magic}, {V(e)}")
        a(f"v_lshrrev_b32 {V(q)}, 16, {V(q)}")
        a(f"v_mul_u32_u24 {V(m)}, {d}, {V(q)}")
        a(f"v_sub_u32 {V(m)}, {V(e)}, {V(m)}")

    def build(self):
        a = self.a
        a.raw(open(f"cdna_kernels/{NAME}.s.ref").read().split("; Override launch")[0].rstrip())
        a.raw("; generation + causal convolution (one channel each), wave 7 layout changes and hand-off polling.")
        a.raw(f"; @launch grid=(256,1,1) block=(512,1,1) lds={LDS_SIZE}")
        a.raw('.amdgcn_target "amdgcn-amd-amdhsa--gfx950"')
        a.raw(".text")
        a.raw(f".globl {KERNEL}")
        a.raw(".p2align 8")
        a.raw(f".type {KERNEL},@function")
        a.label(KERNEL)
        a("s_cmp_ge_u32 s2, 256")
        a("s_cbranch_scc1 L_end")
        if self.prof:
            a(f"s_memrealtime {S(sSTAMP+2, 2)}")
            a(f"s_memtime {S(sSTAMP+4, 2)}")
        a("s_load_dwordx16 s[4:19], s[0:1], 0")
        a("s_load_dwordx16 s[20:35], s[0:1], 64")
        a("s_load_dwordx4 s[36:39], s[0:1], 128")
        a("v_lshrrev_b32 v2, 6, v0")
        a("v_and_b32 v1, 63, v0")
        a(f"v_readfirstlane_b32 {S(sW)}, v2")
        a(f"s_lshl_b32 {S(sR)}, s2, 2")
        a(f"s_and_b32 {S(sR)}, {S(sR)}, 24")
        a(f"s_lshr_b32 {S(sT0)}, s2, 5")
        a(f"s_add_u32 {S(sR)}, {S(sR)}, {S(sT0)}")
        a(f"s_lshl_b32 {S(sJ)}, s2, 2")
        a(f"s_and_b32 {S(sJ)}, {S(sJ)}, 4")
        a(f"s_bfe_u32 {S(sT0)}, s2, 0x20003")
        a(f"s_add_u32 {S(sJ)}, {S(sJ)}, {S(sT0)}")
        snap = a.snapshot()
        ns = self.nstamp
        a(f"s_cmp_ge_u32 {S(sW)}, 4")
        a("s_cbranch_scc1 L_notgemm")
        self.gemm()
        a.label("L_notgemm")
        a.restore(snap)
        self.nstamp = ns
        a(f"s_cmp_eq_u32 {S(sW)}, 7")
        a("s_cbranch_scc1 L_helper")
        self.conv()
        a.label("L_helper")
        a.restore(snap)
        self.nstamp = ns
        self.helper()
        a.label("L_end")
        a("s_endpgm")
        a.raw('.section .rodata,"a"')
        a.raw(".p2align 6")
        a.raw(f".amdhsa_kernel {KERNEL}")
        a.raw("""  .amdhsa_next_free_vgpr 256
  .amdhsa_next_free_sgpr 102
  .amdhsa_accum_offset 256
  .amdhsa_group_segment_fixed_size 0
  .amdhsa_kernarg_size 144
  .amdhsa_user_sgpr_count 2
  .amdhsa_user_sgpr_kernarg_segment_ptr 1
  .amdhsa_system_sgpr_workgroup_id_x 1
.end_amdhsa_kernel""")
        if self.prof:
            a.raw("; stamps " + repr(self.names))
        return a.text()

    def helper(self):
        a = self.a
        self.role = 'help'
        self.names[self.role] = ['start', 'clk0']
        self.nstamp = 2
        vOFF = 2
        vLIN, vEP, vT, vT2, vFL = 7, 8, 9, 10, 11
        vA, vB, vC = 12, 13, 14
        W = 16
        T = 56
        if self.opt['prio_help']:
            a(f"s_setprio {self.opt['prio_help']}")
        for p in range(5):
            a(f"v_add_u32 {V(vT)}, {64*p}, v1")
            self.div_mod(vOFF+p, vT2, vT, 10, 6554)
            a(f"v_mul_u32_u24 {V(vOFF+p)}, 1280, {V(vOFF+p)}")
            a(f"v_lshl_add_u32 {V(vOFF+p)}, {V(vT2)}, 4, {V(vOFF+p)}")
        a(f"v_lshlrev_b32 {V(vLIN)}, 4, v1")
        sX0, sX1 = sP0, sP0+1
        a(f"s_mul_i32 {S(sX0)}, {S(sR)}, {64*1280}")
        a(f"s_mul_i32 {S(sT0)}, {S(sJ)}, 160")
        a(f"s_add_u32 {S(sX0)}, {S(sX0)}, {S(sT0)}")
        a(f"s_add_u32 {S(sX1)}, {S(sX0)}, {32*1280}")
        a(f"v_mov_b32 {V(vFL)}, {L_FLAG}")
        for k in range(4):
            a(f"v_mov_b32 {V(T+k)}, 0")
        a.waitall(lg=True)
        a(f"ds_write_b128 {V(vFL)}, {V(T,4)}")
        self.srd(R_WS, P_WS, WS_SIZE)
        self.srd(R_A, P_U, 2621440)
        self.srd(R_B, P_W2, 1966080)
        self.epoch_load(vEP, sJ, WS_EPC)
        for h in range(2):
            for p in range(5):
                a(f"s_mov_b32 m0, {L_U + (5*h+p)*1024}")
                a(f"buffer_load_dwordx4 {V(vOFF+p)}, {S(R_A,4)}, {S(sX0+h)} offen lds", tag='xp')
        a.waitall(lg=True)
        a("s_barrier")
        for h in range(2):
            for p in range(5):
                a(f"buffer_load_dwordx4 {V(W+4*(5*h+p),4)}, {V(vOFF+p)}, {S(R_B,4)}, {S(sX0+h)} offen")
        a(f"v_lshrrev_b32 {V(vT)}, 4, v1")
        a(f"v_bfe_u32 {V(vT2)}, v1, 2, 2")
        a(f"v_lshl_add_u32 {V(vA)}, {V(vT)}, 3, {V(vT2)}")
        a(f"v_mul_u32_u24 {V(vA)}, 160, {V(vA)}")
        a(f"v_and_b32 {V(vC)}, 3, v1")
        a(f"v_lshl_add_u32 {V(vA)}, {V(vC)}, 3, {V(vA)}")
        a(f"v_add_u32 {V(vA)}, {L_U}, {V(vA)}")
        a(f"v_lshrrev_b32 {V(vB)}, 2, v1")
        a(f"v_mul_u32_u24 {V(vB)}, 160, {V(vB)}")
        a(f"v_mul_u32_u24 {V(vC)}, 40, {V(vC)}")
        a(f"v_add_u32 {V(vB)}, {V(vB)}, {V(vC)}")
        a(f"v_add_u32 {V(vB)}, {L_U}, {V(vB)}")
        vW0, vW1, vRD, vST = 96, 97, 98, 99
        a(f"v_and_b32 {V(vT2)}, 7, v1")
        a(f"v_xor_b32 {V(vW0)}, {V(vT)}, {V(vT2)}")
        a(f"v_lshlrev_b32 {V(vW0)}, 4, {V(vW0)}")
        a(f"v_and_b32 {V(vC)}, 15, v1")
        a(f"v_lshl_add_u32 {V(vW0)}, {V(vC)}, 7, {V(vW0)}")
        a(f"v_xor_b32 {V(vW1)}, 64, {V(vW0)}")
        a(f"v_add_u32 {V(vW0)}, {L_U}, {V(vW0)}")
        a(f"v_add_u32 {V(vW1)}, {L_U}, {V(vW1)}")
        a(f"v_lshrrev_b32 {V(vC)}, 3, v1")
        a(f"v_xor_b32 {V(vRD)}, {V(vC)}, {V(vT2)}")
        a(f"v_lshlrev_b32 {V(vRD)}, 4, {V(vRD)}")
        a(f"v_lshl_add_u32 {V(vRD)}, {V(vC)}, 7, {V(vRD)}")
        a(f"v_add_u32 {V(vRD)}, {L_U}, {V(vRD)}")
        a(f"v_mul_u32_u24 {V(vST)}, {UT_ROW}, {V(vC)}")
        a(f"v_lshl_add_u32 {V(vST)}, {V(vT2)}, 4, {V(vST)}")
        self.epoch_to_tag(vEP)
        a.wait(vmtag='xp')
        self.stamp("xp_in")
        for dl in range(5):
            for h2 in range(2):
                for hh in range(2):
                    r = T + 8*dl + 4*h2 + 2*hh
                    a(f"ds_read_b64_tr_b16 {V(r,2)}, {V(vA)} offset:{(32*h2+4*hh)*160 + 32*dl}")
        a.waitall(lg=True)
        for dl in range(5):
            for h2 in range(2):
                a(f"ds_write_b128 {V(vW0+h2)}, {V(T+8*dl+4*h2,4)} offset:{dl*2048}")
        for p in range(10):
            a(f"ds_read_b128 {V(T+4*p,4)}, {V(vRD)} offset:{p*1024}")
        sU = sP0+2
        a(f"s_mul_i32 {S(sU)}, {S(sJ)}, {80*UT_ROW}")
        a(f"s_lshl_b32 {S(sT0)}, {S(sR)}, 7")
        a(f"s_add_u32 {S(sU)}, {S(sU)}, {S(sT0)}")
        a(f"s_add_u32 {S(sU)}, {S(sU)}, {WS_UT}")
        for p in range(10):
            a(f"buffer_store_dwordx4 {V(T+4*p,4)}, {V(vST)}, {S(R_WS,4)}, {S(sU)} offen sc1")
            if p < 9:
                a(f"s_add_u32 {S(sU)}, {S(sU)}, {8*UT_ROW}")
        a(f"s_cmp_ge_u32 {S(sR)}, 24")
        a("s_cbranch_scc1 L_h_now2")
        a(f"v_add_u32 {V(vC)}, {L_U}, {V(vLIN)}")
        for p in range(10):
            a(f"ds_write_b128 {V(vC)}, {V(W+4*p,4)} offset:{p*1024}")
        for ks in range(2):
            for dl in range(5):
                for hh in range(2):
                    r = W + 4*(5*ks+dl) + 2*hh
                    a(f"ds_read_b64_tr_b16 {V(r,2)}, {V(vB)} offset:{(32*ks+16*hh)*160 + 8*dl}")
        a(f"s_mul_i32 {S(sU)}, {S(sJ)}, {48*5120}")
        a(f"s_mul_i32 {S(sT0)}, {S(sR)}, {2*5120}")
        a(f"s_add_u32 {S(sU)}, {S(sU)}, {S(sT0)}")
        a(f"s_add_u32 {S(sU)}, {S(sU)}, {WS_W2T}")
        for p in range(10):
            a(f"buffer_store_dwordx4 {V(W+4*p,4)}, {V(vLIN)}, {S(R_WS,4)}, {S(sU)} offen offset:{(p % 4)*1024} sc1")
            if p % 4 == 3:
                a(f"s_add_u32 {S(sU)}, {S(sU)}, 4096")
        a.label("L_h_now2")
        a.fence()
        a.waitall(lg=True)
        a(f"v_lshlrev_b32 {V(vC)}, 3, v1")
        a(f"v_mov_b32 {V(100)}, 0")
        a(f"v_mov_b32 {V(101)}, 0")
        for cw in range(3):
            a(f"ds_write_b64 {V(vC)}, {V(100,2)} offset:{L_U + cw*U_SZ}")
        sF = sP0+3
        a(f"s_lshl_b32 {S(sF)}, {S(sJ)}, 12")
        a(f"s_add_u32 {S(sF)}, {S(sF)}, {WS_F1}")
        a(f"s_lshl_b32 {S(sT1)}, {S(sR)}, 7")
        a(f"s_add_u32 {S(sT1)}, {S(sT1)}, {S(sF)}")
        a(f"v_lshlrev_b32 {V(vA)}, 7, v1")
        a.waitall(vm=True)
        self.put_word(vT, sT1)
        self.stamp("e1_pub")
        self.poll([(vT2, vA, sF)], "0xffffffff")
        self.stamp("e1_ok")
        a(f"v_mov_b32 {V(vT)}, 1")
        a(f"ds_write_b32 {V(vFL)}, {V(vT)} offset:{FL_E1}")
        a(f"s_lshr_b32 {S(sU)}, {S(sR)}, 1")
        a(f"s_mul_i32 {S(sU)}, {S(sU)}, 5")
        a(f"s_and_b32 {S(sT1)}, {S(sR)}, 1")
        a(f"s_mul_i32 {S(sT0)}, {S(sT1)}, 3")
        a(f"s_add_u32 {S(sU)}, {S(sU)}, {S(sT0)}")
        a(f"s_mul_i32 {S(sT0)}, {S(sJ)}, 80")
        a(f"s_add_u32 {S(sU)}, {S(sU)}, {S(sT0)}")
        a(f"s_mul_i32 {S(sU)}, {S(sU)}, {UT_ROW}")
        a(f"s_add_u32 {S(sU)}, {S(sU)}, {WS_UT}")
        for cw in range(3):
            if cw == 2:
                a(f"s_cmp_eq_u32 {S(sT1)}, 1")
                a("s_cbranch_scc1 L_h_nou2")
            a(f"s_mov_b32 m0, {L_U + cw*U_SZ + 512}")
            for p in range(4):
                a(f"buffer_load_dwordx4 {V(vLIN)}, {S(R_WS,4)}, {S(sU)} offen offset:{p*1024} sc1 lds")
            a(f"s_add_u32 {S(sU)}, {S(sU)}, {UT_ROW}")
        a.label("L_h_nou2")
        a.waitall(vm=True, lg=True)
        a(f"ds_write_b32 {V(vFL)}, {V(vT)} offset:{FL_U}")
        self.stamp("u_rdy")
        a(f"s_mul_i32 {S(sF)}, {S(sJ)}, {80*128}")
        a(f"s_add_u32 {S(sF)}, {S(sF)}, {WS_F3}")
        a(f"v_and_b32 {V(vB)}, 15, v1")
        a(f"v_lshlrev_b32 {V(vB)}, 7, {V(vB)}")
        a(f"v_add_u32 {V(vB)}, {64*128}, {V(vB)}")
        if not self.opt['noconv']:
            self.poll([(vT2, vA, sF), (vC, vB, sF)], None)
        self.stamp("e3_ok")
        a(f"s_lshl_b32 {S(sU)}, {S(sJ)}, 5")
        a(f"s_add_u32 {S(sU)}, {S(sU)}, {S(sR)}")
        a(f"s_mul_i32 {S(sU)}, {S(sU)}, {AT_BLK}")
        a(f"s_add_u32 {S(sU)}, {S(sU)}, {WS_AT}")
        for p in range(10):
            if p % 4 == 0:
                a(f"s_mov_b32 m0, {L_U + p*1024}")
            a(f"buffer_load_dwordx4 {V(vLIN)}, {S(R_WS,4)}, {S(sU)} offen offset:{(p % 4)*1024} sc1 lds")
            if p % 4 == 3:
                a(f"s_add_u32 {S(sU)}, {S(sU)}, 4096")
        a.waitall(vm=True, lg=True)
        self.stamp("at_in")
        a("s_barrier")
        self.dump_stamps(vT)
        a(f"s_cmp_lg_u32 {S(sR)}, 0")
        a("s_cbranch_scc1 L_end")
        a(f"s_lshl_b32 {S(sT1)}, {S(sJ)}, 7")
        self.put_word(vT, sT1)
        a("s_endpgm")

    def gemm(self):
        a = self.a
        o = self.opt
        self.role = 'gemm'
        self.names[self.role] = ['start', 'clk0']
        self.nstamp = 2
        vLIN, vXS, vWS, vWP, vWO, vFL, vEP, vT, vT2, vT3, vLIN2 = 2, 3, 5, 8, 9, 10, 11, 12, 13, 14, 15
        WR = 16
        BIAS = 16
        ACC2 = 116
        FR = 116
        GWS, GWB, XA = 172, 180, 184
        HB = 196
        ACC1 = 196
        GACC = 244
        B1R = 248
        sXO, sWO, sRING, sW2, sH = sP0, sP0+1, sP0+2, sP0+3, sP0+4
        sHA = sP0+5
        sHB = sP0+9
        sODD = sP0+11
        sXL = sP0+12
        if o['prio_gemm']:
            a(f"s_setprio {o['prio_gemm']}")
        a(f"v_lshlrev_b32 {V(vLIN)}, 4, v1")
        a(f"v_add_u32 {V(vLIN2)}, 4096, {V(vLIN)}")
        a(f"v_lshrrev_b32 {V(vT)}, 3, v1")
        a(f"v_lshrrev_b32 {V(vT2)}, 4, v1")
        a(f"v_and_b32 {V(vT3)}, 7, v1")
        a(f"v_xor_b32 {V(vT3)}, {V(vT3)}, {V(vT2)}")
        a(f"v_lshlrev_b32 {V(vT3)}, 4, {V(vT3)}")
        a(f"v_mul_u32_u24 {V(vT)}, 1280, {V(vT)}")
        a(f"v_add_u32 {V(vXS)}, {V(vT)}, {V(vT3)}")
        a(f"v_xor_b32 {V(vT3)}, 64, {V(vT3)}")
        a(f"v_add_u32 {V(vXS+1)}, {V(vT)}, {V(vT3)}")
        a(f"v_add_u32 {V(vXS+1)}, {8*1280}, {V(vXS+1)}")
        for p in range(3):
            a(f"v_add_u32 {V(vT)}, {64*p}, v1")
            self.div_mod(vT2, vT3, vT, 6, 10923)
            a(f"v_and_b32 {V(vWS+p)}, 19, {V(vT2)}")
            a(f"v_lshrrev_b32 {V(vT)}, 1, {V(vT2)}")
            a(f"v_and_or_b32 {V(vWS+p)}, {V(vT)}, 4, {V(vWS+p)}")
            a(f"v_lshlrev_b32 {V(vT)}, 1, {V(vT2)}")
            a(f"v_and_or_b32 {V(vWS+p)}, {V(vT)}, 8, {V(vWS+p)}")
            a(f"v_mul_u32_u24 {V(vWS+p)}, 3072, {V(vWS+p)}")
            a(f"v_lshl_add_u32 {V(vWS+p)}, {V(vT3)}, 4, {V(vWS+p)}")
        a(f"s_lshl_b32 {S(sXO)}, {S(sR)}, 2")
        a(f"s_add_u32 {S(sXO)}, {S(sXO)}, {S(sW)}")
        a(f"s_mul_i32 {S(sXO)}, {S(sXO)}, {16*1280}")
        a(f"s_lshl_b32 {S(sWO)}, {S(sJ)}, 2")
        a(f"s_add_u32 {S(sWO)}, {S(sWO)}, {S(sW)}")
        a(f"s_mul_i32 {S(sWO)}, {S(sWO)}, 96")
        a(f"s_mul_i32 {S(sRING)}, {S(sW)}, {RING_SZ}")
        a(f"s_add_u32 {S(sRING)}, {S(sRING)}, {L_RING}")
        a(f"s_lshl_b32 {S(sXL)}, {S(sW)}, 11")
        a(f"s_add_u32 {S(sXL)}, {S(sXL)}, {L_X}")
        a(f"s_and_b32 {S(sODD)}, {S(sW)}, 1")
        vB1a, vB1b, vGa, vGb = GWB, GWB+1, GWB+2, GWB+3
        a(f"s_lshl_b32 {S(sT1)}, {S(sODD)}, 5")
        a(f"s_lshl_b32 {S(sT2)}, {S(sODD)}, 6")
        a(f"s_sub_u32 {S(sT2)}, 64, {S(sT2)}")
        a(f"v_lshrrev_b32 {V(vT2)}, 4, v1")
        a(f"v_lshl_add_u32 {V(vT)}, {V(vT2)}, 3, {S(sWO)}")
        a(f"v_add_u32 {V(vB1a)}, {S(sT1)}, {V(vT)}")
        a(f"v_add_u32 {V(vB1b)}, {S(sT2)}, {V(vT)}")
        a(f"v_and_b32 {V(vT)}, 15, v1")
        a(f"v_lshlrev_b32 {V(vT3)}, 4, {V(vT2)}")
        a(f"v_lshl_add_u32 {V(vGa)}, {V(vT)}, 6, {V(vT3)}")
        a(f"v_and_b32 {V(vGb)}, 0xff, {V(vGa)}")
        a.waitall(lg=True)
        self.srd(R_WS, P_WS, WS_SIZE)
        self.srd(R_A, P_U, 2621440)
        self.srd(R_B, P_W1, 1966080)
        a("s_barrier")
        self.epoch_load(vEP, sR, WS_EPR)
        a(f"global_load_dwordx2 {V(B1R,2)}, {V(vB1a)}, {S(P_B1,2)}")
        a(f"global_load_dwordx2 {V(B1R+2,2)}, {V(vB1a)}, {S(P_B1,2)} offset:32")
        a(f"global_load_dwordx2 {V(B1R+4,2)}, {V(vB1b)}, {S(P_B1,2)}")
        a(f"global_load_dwordx4 {V(GWS,4)}, {V(vGa)}, {S(P_GW,2)}")
        a(f"global_load_dwordx4 {V(GWS+4,4)}, {V(vGb)}, {S(P_GW,2)} offset:1024")
        for kk in range(10):
            for par in range(2):
                a(f"s_add_u32 m0, {S(sXL)}, {kk*8192 + par*1024 - kk*128}")
                a(f"buffer_load_dwordx4 {V(vXS+par)}, {S(R_A,4)}, {S(sXO)} offen offset:{kk*128} lds", tag='x')

        def w1_dma(s):
            for p in range(3):
                a(f"s_add_u32 m0, {S(sRING)}, {(s % 4)*3072 + p*1024}")
                a(f"buffer_load_dwordx4 {V(vWS+p)}, {S(R_B,4)}, {S(sWO)} offen lds", tag=('w1', s))
            a(f"s_add_u32 {S(sWO)}, {S(sWO)}, {32*3072}")
        for s in range(4):
            w1_dma(s)
        a(f"v_lshrrev_b32 {V(vT)}, 5, v1")
        a(f"v_lshlrev_b32 {V(vT)}, 4, {V(vT)}")
        a(f"v_bfe_u32 {V(vT3)}, v1, 2, 3")
        a(f"v_add_u32 {V(vT)}, {V(vT)}, {V(vT3)}")
        a(f"v_mul_u32_u24 {V(vT)}, 96, {V(vT)}")
        a(f"v_and_b32 {V(vT3)}, 3, v1")
        a(f"v_lshl_add_u32 {V(vT)}, {V(vT3)}, 3, {V(vT)}")
        a(f"v_add_u32 {V(vT)}, {S(sRING)}, {V(vT)}")
        a(f"v_add_u32 {V(vWP)}, {S(sT1)}, {V(vT)}")
        a(f"v_add_u32 {V(vWO)}, {S(sT2)}, {V(vT)}")
        a(f"v_and_b32 {V(vT)}, 15, v1")
        a(f"v_lshrrev_b32 {V(vT3)}, 1, {V(vT)}")
        a(f"v_xor_b32 {V(vT3)}, {V(vT3)}, {V(vT2)}")
        a(f"v_lshlrev_b32 {V(vT3)}, 4, {V(vT3)}")
        a(f"v_lshl_add_u32 {V(vT)}, {V(vT)}, 7, {V(vT3)}")
        a(f"v_xor_b32 {V(vT3)}, 64, {V(vT)}")
        for tp in range(4):
            a(f"s_xor_b32 {S(sT0)}, {S(sW)}, {tp}")
            a(f"s_lshl_b32 {S(sHA+tp)}, {S(sT0)}, 10")
            a(f"s_lshl_b32 {S(sT0)}, {S(sT0)}, 11")
            a(f"s_add_u32 {S(sT0)}, {S(sT0)}, {L_X}")
            a(f"v_add_u32 {V(XA+2*tp)}, {S(sT0)}, {V(vT)}")
            a(f"v_add_u32 {V(XA+2*tp+1)}, {S(sT0)}, {V(vT3)}")
        a(f"s_mul_i32 {S(sH)}, {S(sR)}, {48*4096}")
        a(f"s_add_u32 {S(sH)}, {S(sH)}, {WS_H}")
        a(f"s_lshr_b32 {S(sT0)}, {S(sW)}, 1")
        a(f"s_lshl_b32 {S(sT1)}, {S(sJ)}, 1")
        a(f"s_add_u32 {S(sT1)}, {S(sT1)}, {S(sT0)}")
        a(f"s_mul_i32 {S(sT1)}, {S(sT1)}, {3*4096}")
        a(f"s_add_u32 {S(sT1)}, {S(sT1)}, {S(sH)}")
        a(f"s_lshl_b32 {S(sT2)}, {S(sODD)}, 13")
        a(f"s_add_u32 {S(sT2)}, {S(sT2)}, {S(sT1)}")
        a(f"s_add_u32 {S(sT1)}, {S(sT1)}, 4096")
        a(f"s_add_u32 {S(sHB)}, {S(sHA)}, {S(sT1)}")
        a(f"s_add_u32 {S(sHB+1)}, {S(sHA+2)}, {S(sT1)}")
        for tp in range(4):
            a(f"s_add_u32 {S(sHA+tp)}, {S(sHA+tp)}, {S(sT2)}")
        a(f"s_mul_i32 {S(sT0)}, {S(sW)}, {12*4096}")
        a(f"s_add_u32 {S(sH)}, {S(sH)}, {S(sT0)}")
        a(f"s_lshl_b32 {S(sW2)}, {S(sJ)}, 2")
        a(f"s_add_u32 {S(sW2)}, {S(sW2)}, {S(sW)}")
        a(f"s_mul_i32 {S(sW2)}, {S(sW2)}, {12*5120}")
        a(f"s_add_u32 {S(sW2)}, {S(sW2)}, {WS_W2T}")
        a(f"v_mov_b32 {V(vFL)}, {L_FLAG}")
        self.epoch_to_tag(vEP)
        self.stamp("issued")
        for ph in range(3):
            a(f"v_lshlrev_b32 {V(BIAS+4*ph)}, 16, {V(B1R+2*ph)}")
            a(f"v_and_b32 {V(BIAS+4*ph+1)}, 0xffff0000, {V(B1R+2*ph)}")
            a(f"v_lshlrev_b32 {V(BIAS+4*ph+2)}, 16, {V(B1R+2*ph+1)}")
            a(f"v_and_b32 {V(BIAS+4*ph+3)}, 0xffff0000, {V(B1R+2*ph+1)}")
        a(f"v_mov_b32 {V(vT)}, 1")
        a.wait(vmtag='x')
        a("s_mov_b64 exec, 1")
        a(f"ds_add_u32 {V(vFL)}, {V(vT)} offset:{FL_X}")
        a("s_mov_b64 exec, -1")
        self.spin_lds(vFL, FL_X, vT2, 4)
        self.stamp("xsync")

        def XF(b, tp): return FR + 28*b + 4*tp
        def WF(b, ph): return FR + 28*b + 16 + 4*ph
        def A1(ph, tp): return ACC1 + 4*(4*ph + tp)

        def g1_reads(s):
            b = s & 1
            kk, ks = s >> 1, s & 1
            out = []
            for ph in range(3):
                for hh in range(2):
                    ad = vWP if ph < 2 else vWO
                    off = (s % 4)*3072 + hh*768 + (32 if ph == 1 else 0)
                    out.append(f"ds_read_b64_tr_b16 {V(WF(b,ph)+2*hh,2)}, {V(ad)} offset:{off}")
            xr = [f"ds_read_b128 {V(XF(b,tp),4)}, {V(XA+2*tp+ks)} offset:{(kk % 8)*8192}" for tp in range(4)]
            return [out[0], out[1], xr[0], xr[1], out[2], out[3], xr[2], xr[3], out[4], out[5]]

        w2n = [0]

        def w2_load():
            n = w2n[0]
            st, dl = divmod(n, 5)
            r = WR + 20*(st % 5) + 4*dl
            if dl < 4:
                a(f"buffer_load_dwordx4 {V(r,4)}, {V(vLIN)}, {S(R_WS,4)}, {S(sW2)} offen offset:{dl*1024} sc1")
            else:
                a(f"buffer_load_dwordx4 {V(r,4)}, {V(vLIN2)}, {S(R_WS,4)}, {S(sW2)} offen sc1")
                a(f"s_add_u32 {S(sW2)}, {S(sW2)}, 5120")
            w2n[0] += 1

        a.wait(vmtag=('w1', 0))
        for t in g1_reads(0):
            a(t)
        for s in range(20):
            b = s & 1
            src = GWS + (4 if s >= 16 else 0)
            a(f"v_mov_b64_dpp {V(GWB,2)}, {V(src,2)} row_newbcast:{s % 16} row_mask:0xf bank_mask:0xf")
            a(f"v_mov_b64_dpp {V(GWB+2,2)}, {V(src+2,2)} row_newbcast:{s % 16} row_mask:0xf bank_mask:0xf")
            a.waitall(lg=True)
            if s in (4, 8, 12, 16):
                self.stamp(f"g1_{s}")
            if s == 15:
                for k in range(8):
                    a(f"v_add_u32 {V(XA+k)}, 0x10000, {V(XA+k)}")
            if s == 16:
                self.spin_lds(vFL, FL_E1, vT2, 1)
            mf = []
            for ph in range(3):
                for tp in range(4):
                    c = V(BIAS+4*ph, 4) if s == 0 else V(A1(ph, tp), 4)
                    mf.append(f"v_mfma_f32_16x16x32_bf16 {V(A1(ph,tp),4)}, {V(WF(b,ph),4)}, {V(XF(b,tp),4)}, {c}")
            c = "0" if s == 0 else V(GACC, 4)
            mf.append(f"v_mfma_f32_16x16x32_bf16 {V(GACC,4)}, {V(GWB,4)}, {V(XF(b,0),4)}, {c}")
            a(mf[0])
            if s + 4 < 20:
                w1_dma(s + 4)
            elif s >= 16:
                for k in range(o['w2pre'] // 4):
                    w2_load()
            a(mf[1])
            rd = []
            if s + 1 < 20:
                a.wait(vmtag=('w1', s + 1))
                rd = g1_reads(s + 1)
            for k in range(2, 13):
                if rd:
                    a(rd.pop(0))
                a(mf[k])
            assert not rd
        self.stamp("g1end")
        a(f"v_mov_b32 {V(vT)}, 1")
        a("s_mov_b64 exec, 1")
        a(f"ds_add_u32 {V(vFL)}, {V(vT)} offset:{FL_G1}")
        a("s_mov_b64 exec, -1")
        HP = FR

        def act(ph, tp, dst):
            r = A1(ph, tp)
            for k in range(4):
                a(f"v_max_f32 {V(r+k)}, 0, {V(r+k)}")
            for k in range(4):
                a(f"v_mul_f32 {V(r+k)}, {V(r+k)}, {V(r+k)}")
            a(f"v_cvt_pk_bf16_f32 {V(dst)}, {V(r)}, {V(r+1)}")
            a(f"v_cvt_pk_bf16_f32 {V(dst+1)}, {V(r+2)}, {V(r+3)}")
        for tp in range(4):
            act(0, tp, HP + 4*tp)
            act(1, tp, HP + 4*tp + 2)
            a(f"buffer_store_dwordx4 {V(HP+4*tp,4)}, {V(vLIN)}, {S(R_WS,4)}, {S(sHA+tp)} offen sc1", tag='h')
        for pp in range(2):
            act(2, 2*pp, HP + 16 + 4*pp)
            act(2, 2*pp+1, HP + 16 + 4*pp + 2)
            a(f"buffer_store_dwordx4 {V(HP+16+4*pp,4)}, {V(vLIN)}, {S(R_WS,4)}, {S(sHB+pp)} offen sc1", tag='h')
        while w2n[0] < 25:
            w2_load()
        vG, vOMG = GACC+1, GACC+2
        a(f"v_cvt_pk_bf16_f32 {V(GACC)}, {V(GACC)}, {V(GACC)}")
        a(f"v_and_b32 {V(GACC)}, 0xffff0000, {V(GACC)}")
        a(f"v_mul_f32 {V(GACC)}, {f32(-math.log2(math.e))}, {V(GACC)}")
        a(f"v_exp_f32 {V(GACC)}, {V(GACC)}")
        a(f"v_add_f32 {V(GACC)}, 1.0, {V(GACC)}")
        a(f"v_rcp_f32 {V(GACC)}, {V(GACC)}")
        a(f"v_cvt_pk_bf16_f32 {V(GACC)}, {V(GACC)}, {V(GACC)}")
        a(f"v_and_b32 {V(GACC)}, 0xffff0000, {V(GACC)}")
        a(f"v_mov_b32 {V(GACC+1)}, {V(GACC)}")
        a(f"v_sub_f32 {V(GACC+2)}, 1.0, {V(GACC)}")
        a(f"v_cvt_pk_bf16_f32 {V(GACC+2)}, {V(GACC+2)}, {V(GACC+2)}")
        a(f"v_and_b32 {V(GACC+2)}, 0xffff0000, {V(GACC+2)}")
        a(f"v_mov_b32 {V(GACC+3)}, {V(GACC+2)}")
        sF = sHA
        a(f"s_lshl_b32 {S(sF)}, {S(sR)}, 12")
        a(f"s_add_u32 {S(sF)}, {S(sF)}, {WS_F2}")
        a(f"s_lshl_b32 {S(sT1)}, {S(sJ)}, 2")
        a(f"s_add_u32 {S(sT1)}, {S(sT1)}, {S(sW)}")
        a(f"s_lshl_b32 {S(sT1)}, {S(sT1)}, 7")
        a(f"s_add_u32 {S(sT1)}, {S(sT1)}, {S(sF)}")
        a(f"s_lshl_b32 {S(sT2)}, {S(sW)}, 10")
        a(f"s_add_u32 {S(sF)}, {S(sF)}, {S(sT2)}")
        a(f"v_lshlrev_b32 {V(vT3)}, 7, v1")
        a.wait(vmtag='h')
        self.put_word(vT, sT1)
        self.stamp("h_pub")
        self.poll([(vT2, vT3, sF)], "0xff")
        self.stamp("e2_ok")

        def A2(tp, dl): return ACC2 + 4*(5*tp + dl)
        def h_load(st):
            for k in range(4):
                a(f"buffer_load_dwordx4 {V(HB+16*(st % 3)+4*k,4)}, {V(vLIN)}, {S(R_WS,4)}, {S(sH)} offen offset:{k*1024} sc1")
            a(f"s_add_u32 {S(sH)}, {S(sH)}, 4096")
        for st in range(3):
            h_load(st)
        B2R = WR + 20*(7 % 5)
        B2F = WR + 20*(8 % 5)
        for st in range(12):
            a.comment(f"GEMM2 k-step {st}")
            if st in (1, 4, 8):
                self.stamp(f"g2_{st}")
            hb = HB + 16*(st % 3)
            wr = WR + 20*(st % 5)

            def mm(tp, breg):
                for dl in range(5):
                    c = "0" if st == 0 else V(A2(tp, dl), 4)
                    a(f"v_mfma_f32_16x16x32_bf16 {V(A2(tp,dl),4)}, {V(wr+4*dl,4)}, {V(breg,4)}, {c}")
            if st % 3 != 1:
                for tp in range(4):
                    mm(tp, hb + 4*tp)
            else:
                mm(1, hb + 2)
                a(f"v_mov_b64 {V(hb+2,2)}, {V(hb+6,2)}")
                mm(3, hb + 10)
                a(f"v_mov_b64 {V(hb+10,2)}, {V(hb+14,2)}")
                mm(0, hb)
                mm(2, hb + 8)
            if st + 3 < 12:
                h_load(st + 3)
            if st + 5 < 12:
                for k in range(5):
                    w2_load()
            if st == 7:
                a(f"v_lshrrev_b32 {V(vT2)}, 4, v1")
                a(f"v_mul_u32_u24 {V(vT3)}, 40, {V(vT2)}")
                a(f"s_mul_i32 {S(sT1)}, {S(sJ)}, 160")
                a(f"v_add_u32 {V(vT)}, {S(sT1)}, {V(vT3)}")
                a(f"global_load_dwordx4 {V(B2R,4)}, {V(vT)}, {S(P_B2,2)}")
                a(f"global_load_dwordx4 {V(B2R+4,4)}, {V(vT)}, {S(P_B2,2)} offset:16")
                a(f"global_load_dwordx2 {V(B2R+8,2)}, {V(vT)}, {S(P_B2,2)} offset:32")
            if st == 10:
                for k in range(10):
                    a(f"v_lshlrev_b32 {V(B2F+2*k)}, 16, {V(B2R+k)}")
                    a(f"v_and_b32 {V(B2F+2*k+1)}, 0xffff0000, {V(B2R+k)}")
        self.stamp("g2end")
        vPW, vPR, vAR, vOW, vOR = vXS, vXS+1, vWP, vWO, vEP
        vOS = vWS
        a(f"v_add_u32 {V(vPW)}, {L_X}, {V(vLIN)}")
        a(f"s_mul_i32 {S(sT1)}, {S(sW)}, 15360")
        a(f"v_add_u32 {V(vPR)}, {S(sT1)}, {V(vPW)}")
        self.spin_lds(vFL, FL_G1, vT2, 4)
        a.fence()
        snap = a.snapshot()
        for w in range(4):
            a.restore(snap)
            if w < 3:
                a(f"s_cmp_lg_u32 {S(sW)}, {w}")
                a(f"s_cbranch_scc1 L_red{w+1}")
            for dest in range(4):
                if dest == w:
                    continue
                slot = w if w < dest else w - 1
                for dl in range(5):
                    a(f"ds_write_b128 {V(vPW)}, {V(A2(dest,dl),4)} offset:{((dest*3+slot)*5+dl)*1024}")
            for k in range(20):
                a(f"v_add_f32 {V(B2F+k)}, {V(B2F+k)}, {V(A2(w,0)+k)}")
            if w < 3:
                a("s_branch L_red_done")
                a.label(f"L_red{w+1}")
        a.label("L_red_done")
        a(f"v_lshrrev_b32 {V(vT2)}, 4, v1")
        a(f"v_bfe_u32 {V(vT)}, v1, 2, 2")
        a(f"v_mad_u32_u24 {V(vT)}, {V(vT2)}, 20, {V(vT)}")
        a(f"v_lshlrev_b32 {V(vAR)}, 7, {V(vT)}")
        a(f"v_and_b32 {V(vT)}, 1, v1")
        a(f"v_lshl_add_u32 {V(vAR)}, {V(vT)}, 6, {V(vAR)}")
        a(f"v_and_b32 {V(vT)}, 2, v1")
        a(f"v_lshl_add_u32 {V(vAR)}, {V(vT)}, 2, {V(vAR)}")
        a(f"s_lshl_b32 {S(sT1)}, {S(sW)}, 4")
        a(f"s_add_u32 {S(sT1)}, {S(sT1)}, {L_U}")
        a(f"v_add_u32 {V(vAR)}, {S(sT1)}, {V(vAR)}")
        a(f"v_and_b32 {V(vT)}, 15, v1")
        a(f"v_mul_u32_u24 {V(vT)}, 160, {V(vT)}")
        a(f"v_mad_u32_u24 {V(vT)}, {V(vT2)}, 40, {V(vT)}")
        a(f"v_add_u32 {V(vOW)}, {S(sRING)}, {V(vT)}")
        a(f"v_add_u32 {V(vOR)}, {S(sRING)}, {V(vLIN)}")
        for p in range(3):
            a(f"v_add_u32 {V(vT)}, {64*p}, v1")
            self.div_mod(vOS+p, vT3, vT, 10, 6554)
            a(f"v_mul_u32_u24 {V(vOS+p)}, 1280, {V(vOS+p)}")
            a(f"v_lshl_add_u32 {V(vOS+p)}, {V(vT3)}, 4, {V(vOS+p)}")
        self.srd(R_C, P_OUT, 2621440)
        a(f"s_mul_i32 {S(sT1)}, {S(sJ)}, 160")
        a(f"s_add_u32 {S(sXO)}, {S(sXO)}, {S(sT1)}")
        a.waitall(lg=True)
        a("s_barrier")
        self.stamp("bar")
        PR = ACC2
        AR = HB
        AF = HB + 12
        for dl in range(5):
            a(f"ds_read_b64_tr_b16 {V(AR+2*dl,2)}, {V(vAR)} offset:{dl*512}")
        for k in range(15):
            a(f"ds_read_b128 {V(PR+4*k,4)}, {V(vPR)} offset:{k*1024}")
        for k in range(10):
            a(f"v_lshlrev_b32 {V(AF+2*k)}, 16, {V(AR+k)}")
            a(f"v_and_b32 {V(AF+2*k+1)}, 0xffff0000, {V(AR+k)}")
        for k in range(10):
            a(f"v_pk_mul_f32 {V(AF+2*k,2)}, {V(AF+2*k,2)}, {V(GACC,2)}")
        for sl in range(3):
            for k in range(10):
                a(f"v_pk_add_f32 {V(B2F+2*k,2)}, {V(B2F+2*k,2)}, {V(PR+20*sl+2*k,2)}")
        for k in range(10):
            a(f"v_pk_fma_f32 {V(B2F+2*k,2)}, {V(B2F+2*k,2)}, {V(GACC+2,2)}, {V(AF+2*k,2)}")
        for k in range(10):
            a(f"v_cvt_pk_bf16_f32 {V(AR+k)}, {V(B2F+2*k)}, {V(B2F+2*k+1)}")
        for dl in range(5):
            a(f"ds_write_b64 {V(vOW)}, {V(AR+2*dl,2)} offset:{8*dl}")
        for p in range(3):
            a(f"ds_read_b128 {V(AF+4*p,4)}, {V(vOR)} offset:{p*1024}")
        for p in range(3):
            if p == 2:
                a("s_mov_b32 exec_hi, 0")
            a(f"buffer_store_dwordx4 {V(AF+4*p,4)}, {V(vOS+p)}, {S(R_C,4)}, {S(sXO)} offen")
        a("s_mov_b64 exec, -1")
        if self.prof:
            a.waitall(vm=True)
        self.stamp("end")
        self.dump_stamps(vT)
        a(f"s_or_b32 {S(sT1)}, {S(sJ)}, {S(sW)}")
        a(f"s_cmp_lg_u32 {S(sT1)}, 0")
        a("s_cbranch_scc1 L_end")
        a(f"s_lshl_b32 {S(sT1)}, {S(sR)}, 7")
        a(f"s_add_u32 {S(sT1)}, {S(sT1)}, {WS_EPR}")
        self.put_word(vT, sT1)
        a("s_endpgm")

    def conv(self):
        a = self.a
        o = self.opt
        self.role = 'conv'
        self.names[self.role] = ['start', 'clk0']
        self.nstamp = 2
        vSR, vUR, vRR, vRR2, vT2R, vT3R = 2, 3, 4, 5, 6, 7
        BAND = 8
        MSK = 28
        vW0, vW1, vW2a, vW2b, vWSp, vOUT, vZ, vFL, vEP, vT, vT2, vT3 = range(32, 44)
        vI, vG, vDT, vDS = 44, 45, 46, 47
        KAF, TB2, TB3, ACC, DP, XA, UR = 48, 116, 140, 156, 188, 212, 224
        sCW, sCH, sKA, sAT, sIT = sP0, sP0+1, sP0+2, sP0+3, sP0+4
        if o['prio_conv']:
            a(f"s_setprio {o['prio_conv']}")
        a(f"s_sub_u32 {S(sCW)}, {S(sW)}, 4")
        a(f"s_and_b32 {S(sT1)}, {S(sR)}, 1")
        a(f"s_add_u32 {S(sT0)}, {S(sT1)}, {S(sCW)}")
        a(f"s_cmp_ge_u32 {S(sT0)}, 3")
        a("s_cbranch_scc1 L_end")
        a(f"s_lshr_b32 {S(sCH)}, {S(sR)}, 1")
        a(f"s_mul_i32 {S(sCH)}, {S(sCH)}, 5")
        a(f"s_mul_i32 {S(sT1)}, {S(sT1)}, 3")
        a(f"s_add_u32 {S(sCH)}, {S(sCH)}, {S(sT1)}")
        a(f"s_add_u32 {S(sCH)}, {S(sCH)}, {S(sCW)}")
        a(f"s_lshl_b32 {S(sAT)}, {S(sCH)}, 7")
        a(f"s_mul_i32 {S(sT0)}, {S(sJ)}, {32*AT_BLK}")
        a(f"s_add_u32 {S(sAT)}, {S(sAT)}, {S(sT0)}")
        a(f"s_add_u32 {S(sAT)}, {S(sAT)}, {WS_AT}")
        a(f"s_mul_i32 {S(sT0)}, {S(sJ)}, 80")
        a(f"s_add_u32 {S(sCH)}, {S(sCH)}, {S(sT0)}")
        a(f"s_mul_i32 {S(sKA)}, {S(sCW)}, {KA_SZ}")
        a(f"s_mul_i32 {S(sT0)}, {S(sCH)}, 384")
        a(f"v_lshl_add_u32 {V(vT)}, v1, 2, {S(sT0)}")
        a(f"v_lshl_add_u32 {V(vT2)}, v1, 1, {S(sT0)}")
        a(f"s_lshl_b32 {S(sT0)}, {S(sCH)}, 1")
        a(f"v_mov_b32 {V(vT3)}, {S(sT0)}")
        P01, P2 = 48, 54
        CUR = 60
        Y, Q, TM = 66, 68, 70
        SE = 72
        CV = 132
        AR1, AI1, X0, X1, X2 = 92, 93, 94, 96, 97
        ONE = 98
        BQ, AP = 100, 116
        DK = DP
        a.waitall(lg=True)
        self.srd(R_WS, P_WS, WS_SIZE)
        self.epoch_load(vEP, sJ, WS_EPC)
        a(f"global_load_ushort {V(vDT)}, {V(vT3)}, {S(P_LDT,2)}")
        a(f"global_load_ushort {V(vDS)}, {V(vT3)}, {S(P_DSK,2)}")
        for k, p in enumerate((P_ARE, P_AIM, P_BRE, P_BIM, P_CRE, P_CIM)):
            a(f"global_load_dword {V(P01+k)}, {V(vT)}, {S(p,2)}")
        for k, p in enumerate((P_ARE, P_AIM, P_BRE, P_BIM, P_CRE, P_CIM)):
            a(f"global_load_ushort {V(P2+k)}, {V(vT2)}, {S(p,2)} offset:256")
        a("s_barrier")
        if o['noconv']:
            a("s_endpgm")
        a(f"v_and_b32 {V(vI)}, 15, v1")
        a(f"v_lshrrev_b32 {V(vG)}, 4, v1")
        a(f"v_lshlrev_b32 {V(vT3)}, 3, {V(vG)}")
        bands = [(1, 11), (2, 6), (1, 3), (3, 5), (4, 4)]
        for k, (w, kap) in enumerate(bands + [(None, 12)]):
            ones = 3 if w is None else (1 << (2*w+1)) - 1
            a(f"s_mov_b32 {S(sT0)}, {hex(ones << kap)}")
            a(f"v_lshlrev_b32_e64 {V(vT)}, {V(vI)}, {S(sT0)}")
            a(f"v_lshrrev_b32 {V(vT)}, {V(vT3)}, {V(vT)}")
            for j in range(4):
                r = BAND + 4*k + j
                a(f"v_bfe_u32 {V(r)}, {V(vT)}, {2*j}, 2")
                a(f"v_mul_u32_u24 {V(r)}, 0x8001, {V(r)}")
                a(f"v_and_b32 {V(r)}, 0x10001, {V(r)}")
                a(f"v_mul_u32_u24 {V(r)}, {'0xffff' if w is None else '0x3f80'}, {V(r)}")
        B4, B8, B12, B8w, B16w = BAND, BAND+4, BAND+8, BAND+12, BAND+16
        a(f"v_mul_u32_u24 {V(vSR)}, {ROWB}, {V(vI)}")
        a(f"v_lshl_add_u32 {V(vSR)}, {V(vG)}, 4, {V(vSR)}")
        a(f"v_add_u32 {V(vSR)}, {S(sKA)}, {V(vSR)}")
        a(f"v_lshlrev_b32 {V(vUR)}, 5, {V(vI)}")
        a(f"v_lshl_add_u32 {V(vUR)}, {V(vG)}, 4, {V(vUR)}")
        a(f"s_add_u32 {S(sT0)}, {S(sKA)}, {L_U}")
        a(f"v_add_u32 {V(vUR)}, {S(sT0)}, {V(vUR)}")
        a(f"v_sub_u32 {V(vT)}, {V(vT3)}, {V(vI)}")
        a(f"v_and_b32 {V(vT2)}, 1, v1")
        a(f"v_mul_u32_u24 {V(vT2)}, {K_RB + 2 - K_RA}, {V(vT2)}")
        a(f"v_lshlrev_b32 {V(vRR)}, 1, {V(vT)}")
        a(f"v_sub_u32 {V(vRR)}, {V(vRR)}, {V(vT2)}")
        a(f"s_add_u32 {S(sT0)}, {S(sKA)}, {K_RB + 32}")
        a(f"v_add_u32 {V(vRR)}, {S(sT0)}, {V(vRR)}")
        a(f"v_add_u32 {V(vRR2)}, 1024, {V(vRR)}")
        a(f"v_lshlrev_b32 {V(vT)}, 2, {V(vG)}")
        a(f"v_sub_u32 {V(vT)}, {V(vI)}, {V(vT)}")
        a(f"s_add_u32 {S(sT0)}, {S(sKA)}, {K_N2 + 104}")
        a(f"v_lshl_add_u32 {V(vT2R)}, {V(vT)}, 3, {S(sT0)}")
        a(f"s_add_u32 {S(sT0)}, {S(sKA)}, {K_N3 + 52}")
        a(f"v_lshl_add_u32 {V(vT3R)}, {V(vT)}, 2, {S(sT0)}")
        a(f"v_lshrrev_b32 {V(vT)}, 1, {V(vG)}")
        a(f"v_lshlrev_b32 {V(vT)}, 8, {V(vT)}")
        a(f"v_lshl_add_u32 {V(vT)}, {V(vI)}, 4, {V(vT)}")
        a(f"v_and_b32 {V(vT2)}, 1, {V(vG)}")
        a(f"v_lshl_add_u32 {V(vT)}, {V(vT2)}, 3, {V(vT)}")
        a(f"s_add_u32 {S(sT0)}, {S(sKA)}, {2*539}")
        a(f"v_sub_u32 {V(vW0)}, {S(sT0)}, {V(vT)}")
        a(f"v_lshlrev_b32 {V(vT)}, 8, {V(vT2)}")
        a(f"v_lshl_add_u32 {V(vT)}, {V(vI)}, 4, {V(vT)}")
        a(f"s_add_u32 {S(sT0)}, {S(sKA)}, {2*278}")
        a(f"v_sub_u32 {V(vW1)}, {S(sT0)}, {V(vT)}")
        a(f"v_lshlrev_b32 {V(vT)}, 7, {V(vT2)}")
        a(f"v_add_u32 {V(vT)}, {S(sKA)}, {V(vT)}")
        a(f"v_lshl_add_u32 {V(vW2a)}, {V(vI)}, 1, {V(vT)}")
        a(f"v_add_u32 {V(vW2a)}, {K_N3 + 64}, {V(vW2a)}")
        a(f"v_add_u32 {V(vW2b)}, 32, {V(vW2a)}")
        a("s_mov_b32 exec_hi, 0")
        a(f"v_lshl_add_u32 {V(vW2a)}, {V(vI)}, 2, {V(vT)}")
        a(f"v_add_u32 {V(vW2a)}, {K_N2 + 128}, {V(vW2a)}")
        a(f"v_add_u32 {V(vW2b)}, 2, {V(vW2a)}")
        a("s_mov_b64 exec, -1")
        a(f"s_add_u32 {S(sT0)}, {S(sKA)}, {2*(543-514)}")
        a(f"v_mov_b32 {V(vWSp)}, {S(sT0)}")
        a(f"s_add_u32 {S(sT0)}, {S(sKA)}, {2*543}")
        a(f"v_writelane_b32 {V(vWSp)}, {S(sT0)}, 32")
        a(f"s_add_u32 {S(sT0)}, {S(sKA)}, {2*(543-257)}")
        a(f"v_writelane_b32 {V(vWSp)}, {S(sT0)}, 63")
        a(f"v_lshrrev_b32 {V(vT)}, 1, {V(vG)}")
        a(f"v_lshlrev_b32 {V(vT)}, 2, {V(vT)}")
        a(f"v_bfe_u32 {V(vT3)}, v1, 2, 2")
        a(f"v_add_u32 {V(vT)}, {V(vT)}, {V(vT3)}")
        a(f"v_mul_u32_u24 {V(vOUT)}, {AT_BLK}, {V(vT)}")
        a(f"v_lshl_add_u32 {V(vOUT)}, {V(vT2)}, 6, {V(vOUT)}")
        a(f"v_and_b32 {V(vT)}, 3, v1")
        a(f"v_lshl_add_u32 {V(vOUT)}, {V(vT)}, 4, {V(vOUT)}")
        a(f"v_lshl_add_u32 {V(vZ)}, v1, 4, {S(sKA)}")
        a(f"v_mov_b32 {V(vFL)}, {L_FLAG}")
        a(f"v_mov_b32 {V(ONE)}, 0x3f80")
        for k in range(12):
            a(f"v_mov_b32 {V(DK+k)}, 0")
        a(f"s_mov_b32 m0, {S(sKA)}")
        self.epoch_to_tag(vEP)
        a.waitall(vm=True)
        self.stamp("par_in")
        L2E = math.log2(math.e)
        hi = struct.unpack("<f", struct.pack("<f", L2E))[0]
        a(f"v_lshlrev_b32 {V(vDT)}, 16, {V(vDT)}")
        a(f"s_mov_b32 {S(sT0)}, {f32(hi)}")
        a(f"v_mul_f32 {V(vT)}, {S(sT0)}, {V(vDT)}")
        a(f"v_fma_f32 {V(vT2)}, {V(vDT)}, {S(sT0)}, -{V(vT)}")
        a(f"v_fmac_f32 {V(vT2)}, {f32(L2E - hi)}, {V(vDT)}")
        a(f"v_exp_f32 {V(vT)}, {V(vT)}")
        a(f"v_mul_f32 {V(vT2)}, {f32(math.log(2.0))}, {V(vT2)}")
        a(f"v_fmac_f32 {V(vT)}, {V(vT)}, {V(vT2)}")
        a(f"v_cvt_pk_bf16_f32 {V(vDT)}, {V(vT)}, {V(vT)}")
        a(f"v_and_b32 {V(vDT)}, 0xffff0000, {V(vDT)}")
        a(f"v_lshlrev_b32 {V(vDS)}, 16, {V(vDS)}")

        def E(e): return SE + 2*(e-1)

        def cm_a(x, w):
            a(f"v_mul_f32 {V(TM)}, {V(x)}, {V(w)}")
            a(f"v_mul_f32 {V(TM+1)}, {V(x)}, {V(w+1)}")

        def cm_b(d, x, w):
            a(f"v_fma_f32 {V(d)}, -{V(x+1)}, {V(w+1)}, {V(TM)}")
            a(f"v_fma_f32 {V(d+1)}, {V(x+1)}, {V(w)}, {V(TM+1)}")

        def setup():
            for k in range(6):
                a(f"v_lshlrev_b32_e64 {V(CUR+k)}, 16, {V(P01+k)}")
                a(f"v_alignbit_b32 {V(P01+k)}, {V(P2+k)}, {V(P01+k)}, 16")
            a(f"v_mul_f32 {V(AR1)}, {V(CUR)}, {V(vDT)}")
            a(f"v_mul_f32 {V(AI1)}, {V(CUR+1)}, {V(vDT)}")
            a(f"v_mul_f32 {V(CUR+2)}, {V(CUR+2)}, {V(vDT)}")
            a(f"v_mul_f32 {V(CUR+3)}, {V(CUR+3)}, {V(vDT)}")
            for m, d in ((8, E(8)), (1, E(1)), (128, Y)):
                a(f"v_mul_f32 {V(X1)}, {f32(m/(2*math.pi))}, {V(AI1)}")
                a(f"v_mul_f32 {V(X0)}, {f32(m*L2E)}, {V(AR1)}")
                a(f"v_fract_f32 {V(X1)}, {V(X1)}")
                a(f"v_exp_f32 {V(X0)}, {V(X0)}")
                a(f"v_cos_f32 {V(d)}, {V(X1)}")
                a(f"v_sin_f32 {V(d+1)}, {V(X1)}")
                if m == 8:
                    cm_a(CUR+2, CUR+4)
                elif m == 1:
                    cm_b(Q, CUR+2, CUR+4)
                a(f"v_mul_f32 {V(d)}, {V(d)}, {V(X0)}")
                a(f"v_mul_f32 {V(d+1)}, {V(d+1)}, {V(X0)}")

        pend = []
        cvn = [0]

        def cvt(row, x, neg=False):
            c = CV + cvn[0] % 16
            cvn[0] += 1
            a(f"v_cvt_pk_bf16_f32 {V(c)}, {V(x)}, {'-' if neg else ''}{V(x+1)}")
            pend.append((row, c))

        def wr(keep):
            if keep and len(pend) < o['wb']:
                return
            keep = 0
            while len(pend) > keep:
                row, c = pend.pop(0)
                a(f"ds_write_addtid_b32 {V(c)} offset:{row*ROWB}")

        def reads(dst):
            for sg in range(4):
                a(f"ds_read_b128 {V(dst+4*sg,4)}, {V(vSR)} offset:{64*sg}")

        def kmm(t, sg):
            a(f"v_mfma_f32_16x16x32_bf16 {V(DK+4*t,4)}, {V(AP+4*sg,4)}, {V(BQ+4*sg,4)}, {V(DK+4*t,4)}")

        setup()
        a(f"s_mov_b32 {S(sIT)}, 0")
        a.waitall(vm=True, lg=True)
        a.fence()
        a.align(3)
        a.label("L_kgen")
        for c in range(16):
            if c < 15:
                cm_a(Q, E(8))
            else:
                cm_a(E(1), E(1))
            cvt(c, Q, neg=True)
            if c < 15:
                cm_b(Q, Q, E(8))
            else:
                cm_b(E(2), E(1), E(1))
            wr(1)
        cm_a(E(2), E(1))
        wr(0)
        reads(BQ)
        cm_b(E(3), E(2), E(1))
        todo = [(4, 2, 2), (5, 4, 1), (6, 4, 2), (7, 4, 3)]
        order = [1, 2, 3, 8, 4, 5, 6, 7]
        for k, e in enumerate(order):
            if k < 4:
                cm_a(E(todo[k][1]), E(todo[k][2]))
                cvt(e-1, E(e))
                cm_b(E(todo[k][0]), E(todo[k][1]), E(todo[k][2]))
            else:
                e2 = order[k-4]
                cm_a(E(e2), Y)
                cvt(e-1, E(e))
                cm_b(E(e2), E(e2), Y)
            wr(1)
        for k, e in enumerate(order):
            if k < 4:
                e2 = order[k+4]
                cm_a(E(e2), Y)
                cvt(8+e-1, E(e))
                cm_b(E(e2), E(e2), Y)
            else:
                e2 = (2, 8, 4, 6)[k-4]
                cm_a(E(e2), Y)
                cvt(8+e-1, E(e))
                cm_b(E(e2), E(e2), Y)
            wr(1)
        cm_a(E(2), Y)
        wr(0)
        reads(AP)
        cvt(0, E(2))
        cm_b(E(2), E(2), Y)
        a(f"ds_write_addtid_b32 {V(ONE)} offset:{8*ROWB}")
        for e in (8, 4, 6):
            cm_a(E(e), Y)
            cvt(e//2-1, E(e))
            cm_b(E(e), E(e), Y)
            wr(1)
        cvt(4, E(2))
        kmm(0, 0)
        wr(1)
        cvt(4+2, E(6))
        kmm(0, 1)
        wr(1)
        for k, e in enumerate((8, 4)):
            cm_a(E(e), Y)
            cvt(4+e//2-1, E(e))
            cm_b(E(e), E(e), Y)
            kmm(0, 2+k)
            wr(1)
        cm_a(E(8), Y)
        wr(0)
        reads(AP)
        first = True
        n = 0
        for r in range(4, 16):
            for e in ((8, 4) if r < 8 else (8,)):
                row = 2*(r-4) + e//4 - 1 if r < 8 else r
                last = (r == 15) or (r == 7 and e == 4)
                if not last and not first:
                    cm_a(E(e), Y)
                first = False
                cvt(row, E(e))
                if not last:
                    cm_b(E(e), E(e), Y)
                wr(1)
                if 5 <= n < 9:
                    kmm(1, n-5)
                n += 1
        a(f"s_add_u32 {S(sIT)}, {S(sIT)}, 1")
        a(f"s_cmp_lt_u32 {S(sIT)}, 3")
        wr(0)
        reads(AP)
        setup()
        for sg in range(4):
            kmm(2, sg)
        assert not a.lg
        a("s_cbranch_scc1 L_kgen")
        self.stamp("kgen")
        Z = 72
        for k in range(4):
            a(f"v_mov_b32 {V(Z+k)}, 0")
        for k in range(4):
            a(f"ds_write_b128 {V(vZ)}, {V(Z,4)} offset:{k*1024}")
        D0, D1, D2 = DK, DK+4, DK+8
        C = 76
        a(f"v_cvt_pk_bf16_f32 {V(C)}, {V(D0+3)}, {V(D0+2)}")
        a(f"v_cvt_pk_bf16_f32 {V(C+1)}, {V(D0+1)}, {V(D0)}")
        a(f"v_cvt_pk_bf16_f32 {V(C+2)}, {V(D0+2)}, {V(D0+1)}")
        a(f"v_cvt_pk_bf16_f32 {V(C+3)}, {V(D1+3)}, {V(D1+3)}")
        a(f"v_cvt_pk_bf16_f32 {V(C+4)}, {V(D1+3)}, {V(D1+2)}")
        a(f"v_cvt_pk_bf16_f32 {V(C+5)}, {V(D1+1)}, {V(D1+1)}")
        a(f"v_cvt_pk_bf16_f32 {V(C+6)}, {V(D1+1)}, {V(D1)}")
        a(f"v_cvt_pk_bf16_f32 {V(C+7)}, {V(D1+2)}, {V(D1+1)}")
        a(f"v_add_f32 {V(C+10)}, {V(D1)}, {V(vDS)}")
        a(f"ds_write_b64 {V(vW0)}, {V(C,2)} offset:{K_RB + 2}")
        a(f"ds_write_b16 {V(vW0)}, {V(C)}")
        a(f"ds_write_b32 {V(vW0)}, {V(C+2)} offset:2")
        a(f"ds_write_b16_d16_hi {V(vW0)}, {V(C+1)} offset:6")
        a(f"v_cvt_pk_bf16_f32 {V(C+10)}, {V(C+10)}, {V(C+10)}")
        a(f"v_cvt_pk_bf16_f32 {V(C+8)}, {V(D2)}, {V(D2+1)}")
        a(f"v_cvt_pk_bf16_f32 {V(C+9)}, {V(D2+2)}, {V(D2+3)}")
        a("s_mov_b32 exec_hi, 0")
        a(f"v_mov_b32 {V(C+10)}, {V(C+3)}")
        a(f"v_add_u32 {V(vT)}, {K_RB + 4}, {V(vW1)}")
        a(f"ds_write2_b32 {V(vW1)}, {V(C+3)}, {V(C+4)} offset0:0 offset1:1")
        a(f"ds_write2_b32 {V(vW1)}, {V(C+5)}, {V(C+6)} offset0:2 offset1:3")
        a(f"ds_write_b16 {V(vW1)}, {V(C+3)} offset:{K_RB + 2}")
        a(f"ds_write2_b32 {V(vT)}, {V(C+3)}, {V(C+7)} offset0:0 offset1:1")
        a(f"ds_write_b32 {V(vT)}, {V(C+5)} offset:8")
        a(f"ds_write_b16_d16_hi {V(vT)}, {V(C+6)} offset:12")
        a("s_mov_b32 exec_lo, 0")
        a("s_mov_b32 exec_hi, 0x80000000")
        a(f"v_mov_b32 {V(C+10)}, {V(C)}")
        a("s_mov_b32 exec_lo, 0x80000000")
        a("s_mov_b32 exec_hi, 0x80000001")
        a(f"ds_write_b16 {V(vWSp)}, {V(C+10)}")
        a(f"ds_write_b16 {V(vWSp)}, {V(C+10)} offset:{K_RB + 2}")
        a("s_mov_b64 exec, -1")
        a(f"ds_write_b16 {V(vW2a)}, {V(C+8)}")
        a(f"ds_write_b16_d16_hi {V(vW2b)}, {V(C+8)}")
        a(f"ds_write_b16 {V(vW2a)}, {V(C+9)} offset:64")
        a(f"ds_write_b16_d16_hi {V(vW2b)}, {V(C+9)} offset:64")
        a(f"v_mov_b32 {V(vT)}, {S(sKA)}")
        a.waitall(lg=True)
        for dp in list(range(7, -1, -1)) + list(range(15, 7, -1)) + [16]:
            for h in range(2):
                if dp == 0:
                    ad, off = vRR2, 2*h
                else:
                    ad, off = vRR, 16*(16-dp) + 2*h
                a(f"ds_read2_b32 {V(KAF+4*dp+2*h,2)}, {V(ad)} offset0:{off} offset1:{off+1}")
        a(f"ds_read_u16 {V(vT2)}, {V(vT)} offset:{K_N2 + 382}")
        for dI in (2, 3, 4):
            for h in range(2):
                off = 16*dI - 30 - 2*h
                a(f"ds_read2_b64 {V(TB2+8*(dI-2)+4*h,4)}, {V(vT2R)} offset0:{off} offset1:{off+1}")
        for dI in (4, 5, 6, 7):
            for h in range(2):
                off = 16*(dI-4) + 2*h
                a(f"ds_read2_b32 {V(TB3+4*(dI-4)+2*h,2)}, {V(vT3R)} offset0:{off} offset1:{off+1}")
        a(f"v_lshl_or_b32 {V(vT2)}, {V(vT2)}, 16, {V(vT2)}")
        for k in range(4):
            a(f"v_and_b32 {V(MSK+k)}, {V(MSK+k)}, {V(vT2)}")
        self.stamp("kexp")
        self.spin_lds(vFL, FL_U, vT2, 1)
        self.stamp("u_ok")
        NU = 6
        U2 = UR + 4*NU
        qs = list(range(-7, 57))
        started = set()

        def U(q): return UR + 4*((q + 7) % NU)

        def uread(q):
            a(f"ds_read_b128 {V(U(q),4)}, {V(vUR)} offset:{480 + 64*q}")

        def accmm(I, A, B):
            c = V(ACC+4*I, 4) if I in started else "0"
            started.add(I)
            a(f"v_mfma_f32_16x16x32_bf16 {V(ACC+4*I,4)}, {V(A,4)}, {V(B,4)}, {c}")
        late = []
        for q in qs[:NU-1]:
            uread(q)
        for q in qs:
            if q + NU - 1 <= 56:
                uread(q + NU - 1)
            if (q + 4) % 8 == 0 and 0 <= (q+4)//8 <= 5:
                a(f"ds_read_b128 {V(U2,4)}, {V(vUR)} offset:{480 + 64*(q+4) - 16}")
            f = (-q) % 8
            Ip = q // 8
            if q >= 0 and f == 0 and Ip <= 5:
                s1 = [(0, U(q), B4), (1, U(q), B8), (2, U(q), B12), (3, U2, B8)]
                if Ip <= 3:
                    s1 += [(4, U(q), B8w), (5, U2, B16w)]
                for (k, uu, bb) in s1:
                    a(f"v_mfma_f32_16x16x32_bf16 {V(DP+4*k,4)}, {V(uu,4)}, {V(bb,4)}, 0")

                def pack2(h):
                    for n, (r, k) in enumerate(((2*h+1, 0), (2*h+1, 2), (2*h, 0), (2*h, 2))):
                        a(f"v_cvt_pk_bf16_f32 {V(XA+4*h+n)}, {V(DP+4*k+r)}, {V(DP+4*(k+1)+r)}")

                def pack3():
                    for n, r in enumerate((3, 2, 1, 0)):
                        a(f"v_cvt_pk_bf16_f32 {V(XA+8+n)}, {V(DP+16+r)}, {V(DP+20+r)}")

                def st2(Ip, h):
                    for dI in (2, 3, 4):
                        if Ip + dI <= 7:
                            accmm(Ip+dI, XA+4*h, TB2+8*(dI-2)+4*h)

                def st3(Ip):
                    for dI in (4, 5, 6, 7):
                        if Ip + dI <= 7:
                            accmm(Ip+dI, XA+8, TB3+4*(dI-4))
                late.append((q+1, lambda: pack2(0)))
                late.append((q+2, lambda: pack2(1)))
                late.append((q+2, lambda Ip=Ip: st2(Ip, 0)))
                late.append((q+3, lambda Ip=Ip: st2(Ip, 1)))
                if Ip <= 3:
                    late.append((q+3, pack3))
                    late.append((q+4, lambda Ip=Ip: st3(Ip)))
            for dp in ([f, f+8] + ([16] if f == 0 else [])):
                I = (q + dp)//8
                if 0 <= I <= 7:
                    accmm(I, KAF+4*dp, U(q))
            if q >= 0 and f == 0 and Ip <= 3:
                accmm(Ip+4, MSK, U(q))
            if q >= 0 and f == 0 and Ip % 2 == 1:
                def out(I=Ip-1):
                    r = ACC + 4*I
                    a(f"v_cvt_pk_bf16_f32 {V(r)}, {V(r)}, {V(r+1)}")
                    a(f"v_cvt_pk_bf16_f32 {V(r+1)}, {V(r+2)}, {V(r+3)}")
                    a(f"v_cvt_pk_bf16_f32 {V(r+2)}, {V(r+4)}, {V(r+5)}")
                    a(f"v_cvt_pk_bf16_f32 {V(r+3)}, {V(r+6)}, {V(r+7)}")

                def out2(I=Ip-1):
                    r = ACC + 4*I
                    a(f"v_permlane32_swap_b32 {V(r)}, {V(r+2)}")
                    a(f"v_permlane32_swap_b32 {V(r+1)}, {V(r+3)}")
                    a(f"buffer_store_dwordx4 {V(r,4)}, {V(vOUT)}, {S(R_WS,4)}, {S(sAT)} offen sc1")
                    a(f"s_add_u32 {S(sAT)}, {S(sAT)}, {8*AT_BLK}")
                late.append((q+5, out))
                late.append((q+6, out2))
            late.sort(key=lambda x: x[0])
            while late and (late[0][0] <= q or q == 56):
                late.pop(0)[1]()
        self.stamp("cend")
        a(f"s_lshl_b32 {S(sT1)}, {S(sCH)}, 7")
        a(f"s_add_u32 {S(sT1)}, {S(sT1)}, {WS_F3}")
        a.waitall(vm=True)
        self.put_word(vT, sT1)
        self.stamp("pub")
        self.dump_stamps(vT)
        a("s_endpgm")


if __name__ == "__main__":
    for e in range(320):
        assert (e*6554) >> 16 == e//10
    for e in range(192):
        assert (e*10923) >> 16 == e//6
    out = sys.argv[1] if len(sys.argv) > 1 else f"cdna_kernels/{NAME}.s"
    opts = {}
    for x in sys.argv[2:]:
        k, v = x.split("=")
        opts[k] = int(v)
    g = Gen(**opts)
    t = g.build()
    open(out, "w").write(t)
    print("written", out, "lines", t.count("\n"), "nop states", g.a.nops)
```

```python
import sys
import math
import struct
from asmlib import Asm, V, S

NAME = "gated_mix__ssm_conv_s4__dense_activation_squared_relu__prompt"
KERNEL = NAME + "_kernel"

WS_EPC = 0
WS_EPR = 1024
WS_F1 = 8192
WS_F2 = 65536
WS_F3 = 196608
WS_PROF = 0xF00000
WS_UT = 0x80000
UT_ROW = 4224
WS_AT = 0x380000
AT_BLK = 10368
WS_W2T = 0x680000
WS_H = 0x880000
WS_SIZE = 0x1000000
L_KA = 0
KA_SZ = 4608
L_U = 13824
U_SZ = 4608
L_FLAG = 27648
L_X = 28672
L_RING = 110592
RING_SZ = 12288
LDS_SIZE = 163840
FL_X, FL_E1, FL_U, FL_G1 = 0, 4, 8, 12
ROWB = 288
K_RA, K_RB, K_N2, K_N3 = 0, 1216, 2368, 2880

SPIN_LDS = 400000
SPIN_GLB = 40000

P_U, P_ARE, P_AIM, P_BRE, P_BIM, P_CRE, P_CIM, P_LDT = 4, 6, 8, 10, 12, 14, 16, 18
P_DSK, P_BX, P_W1, P_B1, P_W2, P_B2, P_GW, P_OUT = 20, 22, 24, 26, 28, 30, 32, 34
P_DBG, P_WS = 36, 38
sW, sR, sJ, sTAG = 40, 41, 42, 43
sT0, sT1, sT2, sT3, sCNT = 44, 45, 46, 47, 48
R_WS, R_A, R_B, R_C = 52, 56, 60, 64
sP0 = 68
sSTAMP = 84


def f32(x):
    return "0x%08x" % struct.unpack("<I", struct.pack("<f", x))[0]


class Gen:
    def __init__(self, prof=False, **opt):
        self.a = Asm()
        self.prof = prof
        self.opt = dict(w2pre=8, prio_gemm=0, prio_conv=1, prio_help=3, wb=8, noconv=0, dbgrole=0, padto=0)
        self.opt.update(opt)
        self.nstamp = 0
        self.names = {}
        self.role = 'all'

    def srd(self, dst, ptr, size):
        a = self.a
        a(f"s_mov_b32 {S(dst)}, {S(ptr)}")
        a(f"s_mov_b32 {S(dst+1)}, {S(ptr+1)}")
        a(f"s_mov_b32 {S(dst+2)}, {hex(size)}")
        a(f"s_mov_b32 {S(dst+3)}, 0x20000")

    def stamp(self, name=None, clk=False):
        if not self.prof:
            return
        a = self.a
        a(f"{'s_memtime' if clk else 's_memrealtime'} {S(sSTAMP, 2)}")
        a(f"v_writelane_b32 v255, {S(sSTAMP)}, {self.nstamp}")
        self.names.setdefault(self.role, []).append(name or f"s{self.nstamp}")
        self.nstamp += 1

    def dump_stamps(self, vt):
        if not self.prof:
            return
        a = self.a
        self.stamp("clk1", clk=True)
        a(f"v_writelane_b32 v255, {S(sSTAMP+2)}, 0")
        a(f"v_writelane_b32 v255, {S(sSTAMP+4)}, 1")
        a(f"s_lshl_b32 {S(sT0)}, s2, 3")
        a(f"s_add_u32 {S(sT0)}, {S(sT0)}, {S(sW)}")
        a(f"s_lshl_b32 {S(sT0)}, {S(sT0)}, 8")
        a(f"s_add_u32 {S(sT0)}, {S(sT0)}, {WS_PROF}")
        a(f"v_lshlrev_b32 {V(vt)}, 2, v1")
        a(f"buffer_store_dword v255, {V(vt)}, {S(R_WS,4)}, {S(sT0)} offen")
        if self.opt['padto'] and self.role == 'help':
            l = a.newlabel("pad")
            a.label(l)
            a(f"s_memrealtime {S(sSTAMP, 2)}")
            a(f"s_sub_u32 {S(sT0)}, {S(sSTAMP)}, {S(sSTAMP+2)}")
            a(f"s_cmp_lt_u32 {S(sT0)}, {self.opt['padto']}")
            a(f"s_cbranch_scc1 {l}")
        if self.opt['dbgrole'] == {'gemm': 1, 'conv': 2, 'help': 3}[self.role]:
            l = a.newlabel("nodbg")
            a(f"s_and_b32 {S(sT0)}, {S(sW)}, 3")
            a(f"s_cmp_lg_u32 {S(sT0)}, {3 if self.role == 'help' else 0}")
            a(f"s_cbranch_scc1 {l}")
            a(f"s_not_b32 {S(sT0)}, {S(sSTAMP+2)}")
            a(f"v_writelane_b32 v255, {S(sT0)}, 1")
            self.srd(R_A, P_DBG, 256)
            if self.role == 'gemm':
                a("v_readlane_b32 s90, v255, 16")
                a("v_writelane_b32 v255, s90, 12")
            a("s_mov_b64 exec, 0xffff")
            a(f"buffer_atomic_umax v255, {V(vt)}, {S(R_A,4)}, 0 offen")
            a("s_mov_b64 exec, -1")
            a.label(l)

    def spin_lds(self, vaddr, off, vt, target):
        a = self.a
        a.waitall(lg=True)
        l, d = a.newlabel("spin"), a.newlabel("spun")
        a(f"s_mov_b32 {S(sCNT)}, 0")
        a.fence()
        a.label(l)
        a(f"ds_read_b32 {V(vt)}, {V(vaddr)} offset:{off}")
        a(f"s_add_u32 {S(sCNT)}, {S(sCNT)}, 1")
        a(f"v_readfirstlane_b32 {S(sT0)}, {V(vt)}")
        a(f"s_cmp_ge_u32 {S(sT0)}, {target}")
        a(f"s_cbranch_scc1 {d}")
        a(f"s_cmp_lt_u32 {S(sCNT)}, {SPIN_LDS}")
        a(f"s_cbranch_scc1 {l}")
        a.label(d)

    def poll(self, loads, execmask):
        a = self.a
        l, d = a.newlabel("poll"), a.newlabel("polled")
        a(f"s_mov_b32 {S(sCNT)}, 0")
        if execmask is not None:
            a("s_mov_b32 exec_hi, 0" if execmask == "0xffffffff" else f"s_mov_b64 exec, {execmask}")
        a.fence()
        a.label(l)
        for (vd, vo, so) in loads:
            a(f"buffer_load_dword {V(vd)}, {V(vo)}, {S(R_WS,4)}, {S(so)} offen sc1")
        a(f"s_add_u32 {S(sCNT)}, {S(sCNT)}, 1")
        a.waitall(vm=True)
        if len(loads) == 2:
            a(f"v_xor_b32 {V(loads[0][0])}, {S(sTAG)}, {V(loads[0][0])}")
            a(f"v_xor_b32 {V(loads[1][0])}, {S(sTAG)}, {V(loads[1][0])}")
            a(f"v_or_b32 {V(loads[0][0])}, {V(loads[0][0])}, {V(loads[1][0])}")
            a(f"v_cmp_ne_u32 vcc, 0, {V(loads[0][0])}")
        else:
            a(f"v_cmp_ne_u32 vcc, {S(sTAG)}, {V(loads[0][0])}")
        a(f"s_cmp_lt_u32 {S(sCNT)}, {SPIN_GLB}")
        a("s_nop 3")
        a(f"s_cbranch_vccz {d}")
        a(f"s_cbranch_scc1 {l}")
        a.label(d)
        if execmask is not None:
            a("s_mov_b64 exec, -1")

    def epoch_load(self, vt, grp, base):
        a = self.a
        a(f"s_lshl_b32 {S(sT0)}, {S(grp)}, 7")
        if base:
            a(f"s_add_u32 {S(sT0)}, {S(sT0)}, {base}")
        a(f"buffer_load_dword {V(vt)}, off, {S(R_WS,4)}, {S(sT0)} sc1")

    def epoch_to_tag(self, vt):
        a = self.a
        a(f"v_readfirstlane_b32 {S(sTAG)}, {V(vt)}")
        a(f"s_mul_i32 {S(sTAG)}, {S(sTAG)}, 1664525")
        a(f"s_add_u32 {S(sTAG)}, {S(sTAG)}, 1013904223")

    def put_word(self, vt, soff):
        a = self.a
        a(f"v_mov_b32 {V(vt)}, {S(sTAG)}")
        a("s_mov_b64 exec, 1")
        a(f"buffer_store_dword {V(vt)}, off, {S(R_WS,4)}, {S(soff)} sc1")
        a("s_mov_b64 exec, -1")

    def div_mod(self, q, m, e, d, magic):
        a = self.a
        a(f"v_mul_u32_u24 {V(q)}, {magic}, {V(e)}")
        a(f"v_lshrrev_b32 {V(q)}, 16, {V(q)}")
        a(f"v_mul_u32_u24 {V(m)}, {d}, {V(q)}")
        a(f"v_sub_u32 {V(m)}, {V(e)}, {V(m)}")

    def build(self):
        a = self.a
        a.raw(open(f"cdna_kernels/{NAME}.s.ref").read().split("; Override launch")[0].rstrip())
        a.raw("; generation + causal convolution (one channel each), wave 7 layout changes and hand-off polling.")
        a.raw(f"; @launch grid=(256,1,1) block=(512,1,1) lds={LDS_SIZE}")
        a.raw('.amdgcn_target "amdgcn-amd-amdhsa--gfx950"')
        a.raw(".text")
        a.raw(f".globl {KERNEL}")
        a.raw(".p2align 8")
        a.raw(f".type {KERNEL},@function")
        a.label(KERNEL)
        a("s_cmp_ge_u32 s2, 256")
        a("s_cbranch_scc1 L_end")
        if self.prof:
            a(f"s_memrealtime {S(sSTAMP+2, 2)}")
            a(f"s_memtime {S(sSTAMP+4, 2)}")
        a("s_load_dwordx16 s[4:19], s[0:1], 0")
        a("s_load_dwordx16 s[20:35], s[0:1], 64")
        a("s_load_dwordx4 s[36:39], s[0:1], 128")
        a("v_lshrrev_b32 v2, 6, v0")
        a("v_and_b32 v1, 63, v0")
        a(f"v_readfirstlane_b32 {S(sW)}, v2")
        a(f"s_lshl_b32 {S(sR)}, s2, 2")
        a(f"s_and_b32 {S(sR)}, {S(sR)}, 24")
        a(f"s_lshr_b32 {S(sT0)}, s2, 5")
        a(f"s_add_u32 {S(sR)}, {S(sR)}, {S(sT0)}")
        a(f"s_lshl_b32 {S(sJ)}, s2, 2")
        a(f"s_and_b32 {S(sJ)}, {S(sJ)}, 4")
        a(f"s_bfe_u32 {S(sT0)}, s2, 0x20003")
        a(f"s_add_u32 {S(sJ)}, {S(sJ)}, {S(sT0)}")
        snap = a.snapshot()
        ns = self.nstamp
        a(f"s_cmp_ge_u32 {S(sW)}, 4")
        a("s_cbranch_scc1 L_notgemm")
        self.gemm()
        a.label("L_notgemm")
        a.restore(snap)
        self.nstamp = ns
        a(f"s_cmp_eq_u32 {S(sW)}, 7")
        a("s_cbranch_scc1 L_helper")
        self.conv()
        a.label("L_helper")
        a.restore(snap)
        self.nstamp = ns
        self.helper()
        a.label("L_end")
        a("s_endpgm")
        a.raw('.section .rodata,"a"')
        a.raw(".p2align 6")
        a.raw(f".amdhsa_kernel {KERNEL}")
        a.raw("""  .amdhsa_next_free_vgpr 256
  .amdhsa_next_free_sgpr 102
  .amdhsa_accum_offset 256
  .amdhsa_group_segment_fixed_size 0
  .amdhsa_kernarg_size 144
  .amdhsa_user_sgpr_count 2
  .amdhsa_user_sgpr_kernarg_segment_ptr 1
  .amdhsa_system_sgpr_workgroup_id_x 1
.end_amdhsa_kernel""")
        if self.prof:
            a.raw("; stamps " + repr(self.names))
        return a.text()

    def helper(self):
        a = self.a
        self.role = 'help'
        self.names[self.role] = ['start', 'clk0']
        self.nstamp = 2
        vOFF = 2
        vLIN, vEP, vT, vT2, vFL = 7, 8, 9, 10, 11
        vA, vB, vC = 12, 13, 14
        W = 16
        T = 56
        if self.opt['prio_help']:
            a(f"s_setprio {self.opt['prio_help']}")
        for p in range(5):
            a(f"v_add_u32 {V(vT)}, {64*p}, v1")
            self.div_mod(vOFF+p, vT2, vT, 10, 6554)
            a(f"v_mul_u32_u24 {V(vOFF+p)}, 1280, {V(vOFF+p)}")
            a(f"v_lshl_add_u32 {V(vOFF+p)}, {V(vT2)}, 4, {V(vOFF+p)}")
        a(f"v_lshlrev_b32 {V(vLIN)}, 4, v1")
        sX0, sX1 = sP0, sP0+1
        a(f"s_mul_i32 {S(sX0)}, {S(sR)}, {64*1280}")
        a(f"s_mul_i32 {S(sT0)}, {S(sJ)}, 160")
        a(f"s_add_u32 {S(sX0)}, {S(sX0)}, {S(sT0)}")
        a(f"s_add_u32 {S(sX1)}, {S(sX0)}, {32*1280}")
        a(f"v_mov_b32 {V(vFL)}, {L_FLAG}")
        for k in range(4):
            a(f"v_mov_b32 {V(T+k)}, 0")
        a.waitall(lg=True)
        a(f"ds_write_b128 {V(vFL)}, {V(T,4)}")
        self.srd(R_WS, P_WS, WS_SIZE)
        self.srd(R_A, P_U, 2621440)
        self.srd(R_B, P_W2, 1966080)
        self.epoch_load(vEP, sJ, WS_EPC)
        for h in range(2):
            for p in range(5):
                a(f"s_mov_b32 m0, {L_U + (5*h+p)*1024}")
                a(f"buffer_load_dwordx4 {V(vOFF+p)}, {S(R_A,4)}, {S(sX0+h)} offen lds", tag='xp')
        a.waitall(lg=True)
        a("s_barrier")
        for h in range(2):
            for p in range(5):
                a(f"buffer_load_dwordx4 {V(W+4*(5*h+p),4)}, {V(vOFF+p)}, {S(R_B,4)}, {S(sX0+h)} offen")
        a(f"v_lshrrev_b32 {V(vT)}, 4, v1")
        a(f"v_bfe_u32 {V(vT2)}, v1, 2, 2")
        a(f"v_lshl_add_u32 {V(vA)}, {V(vT)}, 3, {V(vT2)}")
        a(f"v_mul_u32_u24 {V(vA)}, 160, {V(vA)}")
        a(f"v_and_b32 {V(vC)}, 3, v1")
        a(f"v_lshl_add_u32 {V(vA)}, {V(vC)}, 3, {V(vA)}")
        a(f"v_add_u32 {V(vA)}, {L_U}, {V(vA)}")
        a(f"v_lshrrev_b32 {V(vB)}, 2, v1")
        a(f"v_mul_u32_u24 {V(vB)}, 160, {V(vB)}")
        a(f"v_mul_u32_u24 {V(vC)}, 40, {V(vC)}")
        a(f"v_add_u32 {V(vB)}, {V(vB)}, {V(vC)}")
        a(f"v_add_u32 {V(vB)}, {L_U}, {V(vB)}")
        vW0, vW1, vRD, vST = 96, 97, 98, 99
        a(f"v_and_b32 {V(vT2)}, 7, v1")
        a(f"v_xor_b32 {V(vW0)}, {V(vT)}, {V(vT2)}")
        a(f"v_lshlrev_b32 {V(vW0)}, 4, {V(vW0)}")
        a(f"v_and_b32 {V(vC)}, 15, v1")
        a(f"v_lshl_add_u32 {V(vW0)}, {V(vC)}, 7, {V(vW0)}")
        a(f"v_xor_b32 {V(vW1)}, 64, {V(vW0)}")
        a(f"v_add_u32 {V(vW0)}, {L_U}, {V(vW0)}")
        a(f"v_add_u32 {V(vW1)}, {L_U}, {V(vW1)}")
        a(f"v_lshrrev_b32 {V(vC)}, 3, v1")
        a(f"v_xor_b32 {V(vRD)}, {V(vC)}, {V(vT2)}")
        a(f"v_lshlrev_b32 {V(vRD)}, 4, {V(vRD)}")
        a(f"v_lshl_add_u32 {V(vRD)}, {V(vC)}, 7, {V(vRD)}")
        a(f"v_add_u32 {V(vRD)}, {L_U}, {V(vRD)}")
        a(f"v_mul_u32_u24 {V(vST)}, {UT_ROW}, {V(vC)}")
        a(f"v_lshl_add_u32 {V(vST)}, {V(vT2)}, 4, {V(vST)}")
        self.epoch_to_tag(vEP)
        a.wait(vmtag='xp')
        self.stamp("xp_in")
        for dl in range(5):
            for h2 in range(2):
                for hh in range(2):
                    r = T + 8*dl + 4*h2 + 2*hh
                    a(f"ds_read_b64_tr_b16 {V(r,2)}, {V(vA)} offset:{(32*h2+4*hh)*160 + 32*dl}")
        a.waitall(lg=True)
        for dl in range(5):
            for h2 in range(2):
                a(f"ds_write_b128 {V(vW0+h2)}, {V(T+8*dl+4*h2,4)} offset:{dl*2048}")
        for p in range(10):
            a(f"ds_read_b128 {V(T+4*p,4)}, {V(vRD)} offset:{p*1024}")
        sU = sP0+2
        a(f"s_mul_i32 {S(sU)}, {S(sJ)}, {80*UT_ROW}")
        a(f"s_lshl_b32 {S(sT0)}, {S(sR)}, 7")
        a(f"s_add_u32 {S(sU)}, {S(sU)}, {S(sT0)}")
        a(f"s_add_u32 {S(sU)}, {S(sU)}, {WS_UT}")
        for p in range(10):
            a(f"buffer_store_dwordx4 {V(T+4*p,4)}, {V(vST)}, {S(R_WS,4)}, {S(sU)} offen sc1")
            if p < 9:
                a(f"s_add_u32 {S(sU)}, {S(sU)}, {8*UT_ROW}")
        a(f"s_cmp_ge_u32 {S(sR)}, 24")
        a("s_cbranch_scc1 L_h_now2")
        a(f"v_add_u32 {V(vC)}, {L_U}, {V(vLIN)}")
        for p in range(10):
            a(f"ds_write_b128 {V(vC)}, {V(W+4*p,4)} offset:{p*1024}")
        for ks in range(2):
            for dl in range(5):
                for hh in range(2):
                    r = W + 4*(5*ks+dl) + 2*hh
                    a(f"ds_read_b64_tr_b16 {V(r,2)}, {V(vB)} offset:{(32*ks+16*hh)*160 + 8*dl}")
        a(f"s_mul_i32 {S(sU)}, {S(sJ)}, {48*5120}")
        a(f"s_mul_i32 {S(sT0)}, {S(sR)}, {2*5120}")
        a(f"s_add_u32 {S(sU)}, {S(sU)}, {S(sT0)}")
        a(f"s_add_u32 {S(sU)}, {S(sU)}, {WS_W2T}")
        for p in range(10):
            a(f"buffer_store_dwordx4 {V(W+4*p,4)}, {V(vLIN)}, {S(R_WS,4)}, {S(sU)} offen offset:{(p % 4)*1024} sc1")
            if p % 4 == 3:
                a(f"s_add_u32 {S(sU)}, {S(sU)}, 4096")
        a.label("L_h_now2")
        a.fence()
        a.waitall(lg=True)
        a(f"v_lshlrev_b32 {V(vC)}, 3, v1")
        a(f"v_mov_b32 {V(100)}, 0")
        a(f"v_mov_b32 {V(101)}, 0")
        for cw in range(3):
            a(f"ds_write_b64 {V(vC)}, {V(100,2)} offset:{L_U + cw*U_SZ}")
        sF = sP0+3
        a(f"s_lshl_b32 {S(sF)}, {S(sJ)}, 12")
        a(f"s_add_u32 {S(sF)}, {S(sF)}, {WS_F1}")
        a(f"s_lshl_b32 {S(sT1)}, {S(sR)}, 7")
        a(f"s_add_u32 {S(sT1)}, {S(sT1)}, {S(sF)}")
        a(f"v_lshlrev_b32 {V(vA)}, 7, v1")
        a.waitall(vm=True)
        self.put_word(vT, sT1)
        self.stamp("e1_pub")
        self.poll([(vT2, vA, sF)], "0xffffffff")
        self.stamp("e1_ok")
        a(f"v_mov_b32 {V(vT)}, 1")
        a(f"ds_write_b32 {V(vFL)}, {V(vT)} offset:{FL_E1}")
        a(f"s_lshr_b32 {S(sU)}, {S(sR)}, 1")
        a(f"s_mul_i32 {S(sU)}, {S(sU)}, 5")
        a(f"s_and_b32 {S(sT1)}, {S(sR)}, 1")
        a(f"s_mul_i32 {S(sT0)}, {S(sT1)}, 3")
        a(f"s_add_u32 {S(sU)}, {S(sU)}, {S(sT0)}")
        a(f"s_mul_i32 {S(sT0)}, {S(sJ)}, 80")
        a(f"s_add_u32 {S(sU)}, {S(sU)}, {S(sT0)}")
        a(f"s_mul_i32 {S(sU)}, {S(sU)}, {UT_ROW}")
        a(f"s_add_u32 {S(sU)}, {S(sU)}, {WS_UT}")
        for cw in range(3):
            if cw == 2:
                a(f"s_cmp_eq_u32 {S(sT1)}, 1")
                a("s_cbranch_scc1 L_h_nou2")
            a(f"s_mov_b32 m0, {L_U + cw*U_SZ + 512}")
            for p in range(4):
                a(f"buffer_load_dwordx4 {V(vLIN)}, {S(R_WS,4)}, {S(sU)} offen offset:{p*1024} sc1 lds")
            a(f"s_add_u32 {S(sU)}, {S(sU)}, {UT_ROW}")
        a.label("L_h_nou2")
        a.waitall(vm=True, lg=True)
        a(f"ds_write_b32 {V(vFL)}, {V(vT)} offset:{FL_U}")
        self.stamp("u_rdy")
        a(f"s_mul_i32 {S(sF)}, {S(sJ)}, {80*128}")
        a(f"s_add_u32 {S(sF)}, {S(sF)}, {WS_F3}")
        a(f"v_and_b32 {V(vB)}, 15, v1")
        a(f"v_lshlrev_b32 {V(vB)}, 7, {V(vB)}")
        a(f"v_add_u32 {V(vB)}, {64*128}, {V(vB)}")
        if not self.opt['noconv']:
            self.poll([(vT2, vA, sF), (vC, vB, sF)], None)
        self.stamp("e3_ok")
        a(f"s_lshl_b32 {S(sU)}, {S(sJ)}, 5")
        a(f"s_add_u32 {S(sU)}, {S(sU)}, {S(sR)}")
        a(f"s_mul_i32 {S(sU)}, {S(sU)}, {AT_BLK}")
        a(f"s_add_u32 {S(sU)}, {S(sU)}, {WS_AT}")
        for p in range(10):
            if p % 4 == 0:
                a(f"s_mov_b32 m0, {L_U + p*1024}")
            a(f"buffer_load_dwordx4 {V(vLIN)}, {S(R_WS,4)}, {S(sU)} offen offset:{(p % 4)*1024} sc1 lds")
            if p % 4 == 3:
                a(f"s_add_u32 {S(sU)}, {S(sU)}, 4096")
        a.waitall(vm=True, lg=True)
        self.stamp("at_in")
        a("s_barrier")
        self.dump_stamps(vT)
        a(f"s_cmp_lg_u32 {S(sR)}, 0")
        a("s_cbranch_scc1 L_end")
        a(f"s_lshl_b32 {S(sT1)}, {S(sJ)}, 7")
        self.put_word(vT, sT1)
        a("s_endpgm")

    def gemm(self):
        a = self.a
        o = self.opt
        self.role = 'gemm'
        self.names[self.role] = ['start', 'clk0']
        self.nstamp = 2
        vLIN, vXS, vWS, vWP, vWO, vFL, vEP, vT, vT2, vT3, vLIN2 = 2, 3, 5, 8, 9, 10, 11, 12, 13, 14, 15
        WR = 16
        BIAS = 16
        ACC2 = 116
        FR = 116
        GWS, GWB, XA = 172, 180, 184
        HB = 196
        ACC1 = 196
        GACC = 244
        B1R = 248
        sXO, sWO, sRING, sW2, sH = sP0, sP0+1, sP0+2, sP0+3, sP0+4
        sHA = sP0+5
        sHB = sP0+9
        sODD = sP0+11
        sXL = sP0+12
        if o['prio_gemm']:
            a(f"s_setprio {o['prio_gemm']}")
        a(f"v_lshlrev_b32 {V(vLIN)}, 4, v1")
        a(f"v_add_u32 {V(vLIN2)}, 4096, {V(vLIN)}")
        a(f"v_lshrrev_b32 {V(vT)}, 3, v1")
        a(f"v_lshrrev_b32 {V(vT2)}, 4, v1")
        a(f"v_and_b32 {V(vT3)}, 7, v1")
        a(f"v_xor_b32 {V(vT3)}, {V(vT3)}, {V(vT2)}")
        a(f"v_lshlrev_b32 {V(vT3)}, 4, {V(vT3)}")
        a(f"v_mul_u32_u24 {V(vT)}, 1280, {V(vT)}")
        a(f"v_add_u32 {V(vXS)}, {V(vT)}, {V(vT3)}")
        a(f"v_xor_b32 {V(vT3)}, 64, {V(vT3)}")
        a(f"v_add_u32 {V(vXS+1)}, {V(vT)}, {V(vT3)}")
        a(f"v_add_u32 {V(vXS+1)}, {8*1280}, {V(vXS+1)}")
        for p in range(3):
            a(f"v_add_u32 {V(vT)}, {64*p}, v1")
            self.div_mod(vT2, vT3, vT, 6, 10923)
            a(f"v_and_b32 {V(vWS+p)}, 19, {V(vT2)}")
            a(f"v_lshrrev_b32 {V(vT)}, 1, {V(vT2)}")
            a(f"v_and_or_b32 {V(vWS+p)}, {V(vT)}, 4, {V(vWS+p)}")
            a(f"v_lshlrev_b32 {V(vT)}, 1, {V(vT2)}")
            a(f"v_and_or_b32 {V(vWS+p)}, {V(vT)}, 8, {V(vWS+p)}")
            a(f"v_mul_u32_u24 {V(vWS+p)}, 3072, {V(vWS+p)}")
            a(f"v_lshl_add_u32 {V(vWS+p)}, {V(vT3)}, 4, {V(vWS+p)}")
        a(f"s_lshl_b32 {S(sXO)}, {S(sR)}, 2")
        a(f"s_add_u32 {S(sXO)}, {S(sXO)}, {S(sW)}")
        a(f"s_mul_i32 {S(sXO)}, {S(sXO)}, {16*1280}")
        a(f"s_lshl_b32 {S(sWO)}, {S(sJ)}, 2")
        a(f"s_add_u32 {S(sWO)}, {S(sWO)}, {S(sW)}")
        a(f"s_mul_i32 {S(sWO)}, {S(sWO)}, 96")
        a(f"s_mul_i32 {S(sRING)}, {S(sW)}, {RING_SZ}")
        a(f"s_add_u32 {S(sRING)}, {S(sRING)}, {L_RING}")
        a(f"s_lshl_b32 {S(sXL)}, {S(sW)}, 11")
        a(f"s_add_u32 {S(sXL)}, {S(sXL)}, {L_X}")
        a(f"s_and_b32 {S(sODD)}, {S(sW)}, 1")
        vB1a, vB1b, vGa, vGb = GWB, GWB+1, GWB+2, GWB+3
        a(f"s_lshl_b32 {S(sT1)}, {S(sODD)}, 5")
        a(f"s_lshl_b32 {S(sT2)}, {S(sODD)}, 6")
        a(f"s_sub_u32 {S(sT2)}, 64, {S(sT2)}")
        a(f"v_lshrrev_b32 {V(vT2)}, 4, v1")
        a(f"v_lshl_add_u32 {V(vT)}, {V(vT2)}, 3, {S(sWO)}")
        a(f"v_add_u32 {V(vB1a)}, {S(sT1)}, {V(vT)}")
        a(f"v_add_u32 {V(vB1b)}, {S(sT2)}, {V(vT)}")
        a(f"v_and_b32 {V(vT)}, 15, v1")
        a(f"v_lshlrev_b32 {V(vT3)}, 4, {V(vT2)}")
        a(f"v_lshl_add_u32 {V(vGa)}, {V(vT)}, 6, {V(vT3)}")
        a(f"v_and_b32 {V(vGb)}, 0xff, {V(vGa)}")
        a.waitall(lg=True)
        self.srd(R_WS, P_WS, WS_SIZE)
        self.srd(R_A, P_U, 2621440)
        self.srd(R_B, P_W1, 1966080)
        a("s_barrier")
        self.epoch_load(vEP, sR, WS_EPR)
        a(f"global_load_dwordx2 {V(B1R,2)}, {V(vB1a)}, {S(P_B1,2)}")
        a(f"global_load_dwordx2 {V(B1R+2,2)}, {V(vB1a)}, {S(P_B1,2)} offset:32")
        a(f"global_load_dwordx2 {V(B1R+4,2)}, {V(vB1b)}, {S(P_B1,2)}")
        a(f"global_load_dwordx4 {V(GWS,4)}, {V(vGa)}, {S(P_GW,2)}")
        a(f"global_load_dwordx4 {V(GWS+4,4)}, {V(vGb)}, {S(P_GW,2)} offset:1024")
        for kk in range(10):
            for par in range(2):
                a(f"s_add_u32 m0, {S(sXL)}, {kk*8192 + par*1024 - kk*128}")
                a(f"buffer_load_dwordx4 {V(vXS+par)}, {S(R_A,4)}, {S(sXO)} offen offset:{kk*128} lds", tag='x')

        def w1_dma(s):
            for p in range(3):
                a(f"s_add_u32 m0, {S(sRING)}, {(s % 4)*3072 + p*1024}")
                a(f"buffer_load_dwordx4 {V(vWS+p)}, {S(R_B,4)}, {S(sWO)} offen lds", tag=('w1', s))
            a(f"s_add_u32 {S(sWO)}, {S(sWO)}, {32*3072}")
        for s in range(4):
            w1_dma(s)
        a(f"v_lshrrev_b32 {V(vT)}, 5, v1")
        a(f"v_lshlrev_b32 {V(vT)}, 4, {V(vT)}")
        a(f"v_bfe_u32 {V(vT3)}, v1, 2, 3")
        a(f"v_add_u32 {V(vT)}, {V(vT)}, {V(vT3)}")
        a(f"v_mul_u32_u24 {V(vT)}, 96, {V(vT)}")
        a(f"v_and_b32 {V(vT3)}, 3, v1")
        a(f"v_lshl_add_u32 {V(vT)}, {V(vT3)}, 3, {V(vT)}")
        a(f"v_add_u32 {V(vT)}, {S(sRING)}, {V(vT)}")
        a(f"v_add_u32 {V(vWP)}, {S(sT1)}, {V(vT)}")
        a(f"v_add_u32 {V(vWO)}, {S(sT2)}, {V(vT)}")
        a(f"v_and_b32 {V(vT)}, 15, v1")
        a(f"v_lshrrev_b32 {V(vT3)}, 1, {V(vT)}")
        a(f"v_xor_b32 {V(vT3)}, {V(vT3)}, {V(vT2)}")
        a(f"v_lshlrev_b32 {V(vT3)}, 4, {V(vT3)}")
        a(f"v_lshl_add_u32 {V(vT)}, {V(vT)}, 7, {V(vT3)}")
        a(f"v_xor_b32 {V(vT3)}, 64, {V(vT)}")
        for tp in range(4):
            a(f"s_xor_b32 {S(sT0)}, {S(sW)}, {tp}")
            a(f"s_lshl_b32 {S(sHA+tp)}, {S(sT0)}, 10")
            a(f"s_lshl_b32 {S(sT0)}, {S(sT0)}, 11")
            a(f"s_add_u32 {S(sT0)}, {S(sT0)}, {L_X}")
            a(f"v_add_u32 {V(XA+2*tp)}, {S(sT0)}, {V(vT)}")
            a(f"v_add_u32 {V(XA+2*tp+1)}, {S(sT0)}, {V(vT3)}")
        a(f"s_mul_i32 {S(sH)}, {S(sR)}, {48*4096}")
        a(f"s_add_u32 {S(sH)}, {S(sH)}, {WS_H}")
        a(f"s_lshr_b32 {S(sT0)}, {S(sW)}, 1")
        a(f"s_lshl_b32 {S(sT1)}, {S(sJ)}, 1")
        a(f"s_add_u32 {S(sT1)}, {S(sT1)}, {S(sT0)}")
        a(f"s_mul_i32 {S(sT1)}, {S(sT1)}, {3*4096}")
        a(f"s_add_u32 {S(sT1)}, {S(sT1)}, {S(sH)}")
        a(f"s_lshl_b32 {S(sT2)}, {S(sODD)}, 13")
        a(f"s_add_u32 {S(sT2)}, {S(sT2)}, {S(sT1)}")
        a(f"s_add_u32 {S(sT1)}, {S(sT1)}, 4096")
        a(f"s_add_u32 {S(sHB)}, {S(sHA)}, {S(sT1)}")
        a(f"s_add_u32 {S(sHB+1)}, {S(sHA+2)}, {S(sT1)}")
        for tp in range(4):
            a(f"s_add_u32 {S(sHA+tp)}, {S(sHA+tp)}, {S(sT2)}")
        a(f"s_mul_i32 {S(sT0)}, {S(sW)}, {12*4096}")
        a(f"s_add_u32 {S(sH)}, {S(sH)}, {S(sT0)}")
        a(f"s_lshl_b32 {S(sW2)}, {S(sJ)}, 2")
        a(f"s_add_u32 {S(sW2)}, {S(sW2)}, {S(sW)}")
        a(f"s_mul_i32 {S(sW2)}, {S(sW2)}, {12*5120}")
        a(f"s_add_u32 {S(sW2)}, {S(sW2)}, {WS_W2T}")
        a(f"v_mov_b32 {V(vFL)}, {L_FLAG}")
        self.epoch_to_tag(vEP)
        self.stamp("issued")
        for ph in range(3):
            a(f"v_lshlrev_b32 {V(BIAS+4*ph)}, 16, {V(B1R+2*ph)}")
            a(f"v_and_b32 {V(BIAS+4*ph+1)}, 0xffff0000, {V(B1R+2*ph)}")
            a(f"v_lshlrev_b32 {V(BIAS+4*ph+2)}, 16, {V(B1R+2*ph+1)}")
            a(f"v_and_b32 {V(BIAS+4*ph+3)}, 0xffff0000, {V(B1R+2*ph+1)}")
        a(f"v_mov_b32 {V(vT)}, 1")
        a.wait(vmtag='x')
        a("s_mov_b64 exec, 1")
        a(f"ds_add_u32 {V(vFL)}, {V(vT)} offset:{FL_X}")
        a("s_mov_b64 exec, -1")
        self.spin_lds(vFL, FL_X, vT2, 4)
        self.stamp("xsync")

        def XF(b, tp): return FR + 28*b + 4*tp
        def WF(b, ph): return FR + 28*b + 16 + 4*ph
        def A1(ph, tp): return ACC1 + 4*(4*ph + tp)

        def g1_reads(s):
            b = s & 1
            kk, ks = s >> 1, s & 1
            out = []
            for ph in range(3):
                for hh in range(2):
                    ad = vWP if ph < 2 else vWO
                    off = (s % 4)*3072 + hh*768 + (32 if ph == 1 else 0)
                    out.append(f"ds_read_b64_tr_b16 {V(WF(b,ph)+2*hh,2)}, {V(ad)} offset:{off}")
            xr = [f"ds_read_b128 {V(XF(b,tp),4)}, {V(XA+2*tp+ks)} offset:{(kk % 8)*8192}" for tp in range(4)]
            return [out[0], out[1], xr[0], xr[1], out[2], out[3], xr[2], xr[3], out[4], out[5]]

        w2n = [0]

        def w2_load():
            n = w2n[0]
            st, dl = divmod(n, 5)
            r = WR + 20*(st % 5) + 4*dl
            if dl < 4:
                a(f"buffer_load_dwordx4 {V(r,4)}, {V(vLIN)}, {S(R_WS,4)}, {S(sW2)} offen offset:{dl*1024} sc1")
            else:
                a(f"buffer_load_dwordx4 {V(r,4)}, {V(vLIN2)}, {S(R_WS,4)}, {S(sW2)} offen sc1")
                a(f"s_add_u32 {S(sW2)}, {S(sW2)}, 5120")
            w2n[0] += 1

        a.wait(vmtag=('w1', 0))
        for t in g1_reads(0):
            a(t)
        for s in range(20):
            b = s & 1
            src = GWS + (4 if s >= 16 else 0)
            a(f"v_mov_b64_dpp {V(GWB,2)}, {V(src,2)} row_newbcast:{s % 16} row_mask:0xf bank_mask:0xf")
            a(f"v_mov_b64_dpp {V(GWB+2,2)}, {V(src+2,2)} row_newbcast:{s % 16} row_mask:0xf bank_mask:0xf")
            a.waitall(lg=True)
            if s in (4, 8, 12, 16):
                self.stamp(f"g1_{s}")
            if s == 15:
                for k in range(8):
                    a(f"v_add_u32 {V(XA+k)}, 0x10000, {V(XA+k)}")
            if s == 16:
                self.spin_lds(vFL, FL_E1, vT2, 1)
            mf = []
            for ph in range(3):
                for tp in range(4):
                    c = V(BIAS+4*ph, 4) if s == 0 else V(A1(ph, tp), 4)
                    mf.append(f"v_mfma_f32_16x16x32_bf16 {V(A1(ph,tp),4)}, {V(WF(b,ph),4)}, {V(XF(b,tp),4)}, {c}")
            c = "0" if s == 0 else V(GACC, 4)
            mf.append(f"v_mfma_f32_16x16x32_bf16 {V(GACC,4)}, {V(GWB,4)}, {V(XF(b,0),4)}, {c}")
            a(mf[0])
            if s + 4 < 20:
                w1_dma(s + 4)
            elif s >= 16:
                for k in range(o['w2pre'] // 4):
                    w2_load()
            a(mf[1])
            rd = []
            if s + 1 < 20:
                a.wait(vmtag=('w1', s + 1))
                rd = g1_reads(s + 1)
            for k in range(2, 13):
                if rd:
                    a(rd.pop(0))
                a(mf[k])
            assert not rd
        self.stamp("g1end")
        a(f"v_mov_b32 {V(vT)}, 1")
        a("s_mov_b64 exec, 1")
        a(f"ds_add_u32 {V(vFL)}, {V(vT)} offset:{FL_G1}")
        a("s_mov_b64 exec, -1")
        HP = FR

        def act(ph, tp, dst):
            r = A1(ph, tp)
            for k in range(4):
                a(f"v_max_f32 {V(r+k)}, 0, {V(r+k)}")
            for k in range(4):
                a(f"v_mul_f32 {V(r+k)}, {V(r+k)}, {V(r+k)}")
            a(f"v_cvt_pk_bf16_f32 {V(dst)}, {V(r)}, {V(r+1)}")
            a(f"v_cvt_pk_bf16_f32 {V(dst+1)}, {V(r+2)}, {V(r+3)}")
        for tp in range(4):
            act(0, tp, HP + 4*tp)
            act(1, tp, HP + 4*tp + 2)
            a(f"buffer_store_dwordx4 {V(HP+4*tp,4)}, {V(vLIN)}, {S(R_WS,4)}, {S(sHA+tp)} offen sc1", tag='h')
        for pp in range(2):
            act(2, 2*pp, HP + 16 + 4*pp)
            act(2, 2*pp+1, HP + 16 + 4*pp + 2)
            a(f"buffer_store_dwordx4 {V(HP+16+4*pp,4)}, {V(vLIN)}, {S(R_WS,4)}, {S(sHB+pp)} offen sc1", tag='h')
        while w2n[0] < 25:
            w2_load()
        vG, vOMG = GACC+1, GACC+2
        a(f"v_cvt_pk_bf16_f32 {V(GACC)}, {V(GACC)}, {V(GACC)}")
        a(f"v_and_b32 {V(GACC)}, 0xffff0000, {V(GACC)}")
        a(f"v_mul_f32 {V(GACC)}, {f32(-math.log2(math.e))}, {V(GACC)}")
        a(f"v_exp_f32 {V(GACC)}, {V(GACC)}")
        a(f"v_add_f32 {V(GACC)}, 1.0, {V(GACC)}")
        a(f"v_rcp_f32 {V(GACC)}, {V(GACC)}")
        a(f"v_cvt_pk_bf16_f32 {V(GACC)}, {V(GACC)}, {V(GACC)}")
        a(f"v_and_b32 {V(GACC)}, 0xffff0000, {V(GACC)}")
        a(f"v_mov_b32 {V(GACC+1)}, {V(GACC)}")
        a(f"v_sub_f32 {V(GACC+2)}, 1.0, {V(GACC)}")
        a(f"v_cvt_pk_bf16_f32 {V(GACC+2)}, {V(GACC+2)}, {V(GACC+2)}")
        a(f"v_and_b32 {V(GACC+2)}, 0xffff0000, {V(GACC+2)}")
        a(f"v_mov_b32 {V(GACC+3)}, {V(GACC+2)}")
        sF = sHA
        a(f"s_lshl_b32 {S(sF)}, {S(sR)}, 12")
        a(f"s_add_u32 {S(sF)}, {S(sF)}, {WS_F2}")
        a(f"s_lshl_b32 {S(sT1)}, {S(sJ)}, 2")
        a(f"s_add_u32 {S(sT1)}, {S(sT1)}, {S(sW)}")
        a(f"s_lshl_b32 {S(sT1)}, {S(sT1)}, 7")
        a(f"s_add_u32 {S(sT1)}, {S(sT1)}, {S(sF)}")
        a(f"s_lshl_b32 {S(sT2)}, {S(sW)}, 10")
        a(f"s_add_u32 {S(sF)}, {S(sF)}, {S(sT2)}")
        a(f"v_lshlrev_b32 {V(vT3)}, 7, v1")
        a.wait(vmtag='h')
        self.put_word(vT, sT1)
        self.stamp("h_pub")
        self.poll([(vT2, vT3, sF)], "0xff")
        self.stamp("e2_ok")

        def A2(tp, dl): return ACC2 + 4*(5*tp + dl)
        def h_load(st):
            for k in range(4):
                a(f"buffer_load_dwordx4 {V(HB+16*(st % 3)+4*k,4)}, {V(vLIN)}, {S(R_WS,4)}, {S(sH)} offen offset:{k*1024} sc1")
            a(f"s_add_u32 {S(sH)}, {S(sH)}, 4096")
        for st in range(3):
            h_load(st)
        B2R = WR + 20*(7 % 5)
        B2F = WR + 20*(8 % 5)
        for st in range(12):
            a.comment(f"GEMM2 k-step {st}")
            if st in (1, 4, 8):
                self.stamp(f"g2_{st}")
            hb = HB + 16*(st % 3)
            wr = WR + 20*(st % 5)

            def mm(tp, breg):
                for dl in range(5):
                    c = "0" if st == 0 else V(A2(tp, dl), 4)
                    a(f"v_mfma_f32_16x16x32_bf16 {V(A2(tp,dl),4)}, {V(wr+4*dl,4)}, {V(breg,4)}, {c}")
            if st % 3 != 1:
                for tp in range(4):
                    mm(tp, hb + 4*tp)
            else:
                mm(1, hb + 2)
                a(f"v_mov_b64 {V(hb+2,2)}, {V(hb+6,2)}")
                mm(3, hb + 10)
                a(f"v_mov_b64 {V(hb+10,2)}, {V(hb+14,2)}")
                mm(0, hb)
                mm(2, hb + 8)
            if st + 3 < 12:
                h_load(st + 3)
            if st + 5 < 12:
                for k in range(5):
                    w2_load()
            if st == 7:
                a(f"v_lshrrev_b32 {V(vT2)}, 4, v1")
                a(f"v_mul_u32_u24 {V(vT3)}, 40, {V(vT2)}")
                a(f"s_mul_i32 {S(sT1)}, {S(sJ)}, 160")
                a(f"v_add_u32 {V(vT)}, {S(sT1)}, {V(vT3)}")
                a(f"global_load_dwordx4 {V(B2R,4)}, {V(vT)}, {S(P_B2,2)}")
                a(f"global_load_dwordx4 {V(B2R+4,4)}, {V(vT)}, {S(P_B2,2)} offset:16")
                a(f"global_load_dwordx2 {V(B2R+8,2)}, {V(vT)}, {S(P_B2,2)} offset:32")
            if st == 10:
                for k in range(10):
                    a(f"v_lshlrev_b32 {V(B2F+2*k)}, 16, {V(B2R+k)}")
                    a(f"v_and_b32 {V(B2F+2*k+1)}, 0xffff0000, {V(B2R+k)}")
        self.stamp("g2end")
        vPW, vPR, vAR, vOW, vOR = vXS, vXS+1, vWP, vWO, vEP
        vOS = vWS
        a(f"v_add_u32 {V(vPW)}, {L_X}, {V(vLIN)}")
        a(f"s_mul_i32 {S(sT1)}, {S(sW)}, 15360")
        a(f"v_add_u32 {V(vPR)}, {S(sT1)}, {V(vPW)}")
        self.spin_lds(vFL, FL_G1, vT2, 4)
        a.fence()
        snap = a.snapshot()
        for w in range(4):
            a.restore(snap)
            if w < 3:
                a(f"s_cmp_lg_u32 {S(sW)}, {w}")
                a(f"s_cbranch_scc1 L_red{w+1}")
            for dest in range(4):
                if dest == w:
                    continue
                slot = w if w < dest else w - 1
                for dl in range(5):
                    a(f"ds_write_b128 {V(vPW)}, {V(A2(dest,dl),4)} offset:{((dest*3+slot)*5+dl)*1024}")
            for k in range(20):
                a(f"v_add_f32 {V(B2F+k)}, {V(B2F+k)}, {V(A2(w,0)+k)}")
            if w < 3:
                a("s_branch L_red_done")
                a.label(f"L_red{w+1}")
        a.label("L_red_done")
        a(f"v_lshrrev_b32 {V(vT2)}, 4, v1")
        a(f"v_bfe_u32 {V(vT)}, v1, 2, 2")
        a(f"v_mad_u32_u24 {V(vT)}, {V(vT2)}, 20, {V(vT)}")
        a(f"v_lshlrev_b32 {V(vAR)}, 7, {V(vT)}")
        a(f"v_and_b32 {V(vT)}, 1, v1")
        a(f"v_lshl_add_u32 {V(vAR)}, {V(vT)}, 6, {V(vAR)}")
        a(f"v_and_b32 {V(vT)}, 2, v1")
        a(f"v_lshl_add_u32 {V(vAR)}, {V(vT)}, 2, {V(vAR)}")
        a(f"s_lshl_b32 {S(sT1)}, {S(sW)}, 4")
        a(f"s_add_u32 {S(sT1)}, {S(sT1)}, {L_U}")
        a(f"v_add_u32 {V(vAR)}, {S(sT1)}, {V(vAR)}")
        a(f"v_and_b32 {V(vT)}, 15, v1")
        a(f"v_mul_u32_u24 {V(vT)}, 160, {V(vT)}")
        a(f"v_mad_u32_u24 {V(vT)}, {V(vT2)}, 40, {V(vT)}")
        a(f"v_add_u32 {V(vOW)}, {S(sRING)}, {V(vT)}")
        a(f"v_add_u32 {V(vOR)}, {S(sRING)}, {V(vLIN)}")
        for p in range(3):
            a(f"v_add_u32 {V(vT)}, {64*p}, v1")
            self.div_mod(vOS+p, vT3, vT, 10, 6554)
            a(f"v_mul_u32_u24 {V(vOS+p)}, 1280, {V(vOS+p)}")
            a(f"v_lshl_add_u32 {V(vOS+p)}, {V(vT3)}, 4, {V(vOS+p)}")
        self.srd(R_C, P_OUT, 2621440)
        a(f"s_mul_i32 {S(sT1)}, {S(sJ)}, 160")
        a(f"s_add_u32 {S(sXO)}, {S(sXO)}, {S(sT1)}")
        a.waitall(lg=True)
        a("s_barrier")
        self.stamp("bar")
        PR = ACC2
        AR = HB
        AF = HB + 12
        for dl in range(5):
            a(f"ds_read_b64_tr_b16 {V(AR+2*dl,2)}, {V(vAR)} offset:{dl*512}")
        for k in range(15):
            a(f"ds_read_b128 {V(PR+4*k,4)}, {V(vPR)} offset:{k*1024}")
        for k in range(10):
            a(f"v_lshlrev_b32 {V(AF+2*k)}, 16, {V(AR+k)}")
            a(f"v_and_b32 {V(AF+2*k+1)}, 0xffff0000, {V(AR+k)}")
        for k in range(10):
            a(f"v_pk_mul_f32 {V(AF+2*k,2)}, {V(AF+2*k,2)}, {V(GACC,2)}")
        for sl in range(3):
            for k in range(10):
                a(f"v_pk_add_f32 {V(B2F+2*k,2)}, {V(B2F+2*k,2)}, {V(PR+20*sl+2*k,2)}")
        for k in range(10):
            a(f"v_pk_fma_f32 {V(B2F+2*k,2)}, {V(B2F+2*k,2)}, {V(GACC+2,2)}, {V(AF+2*k,2)}")
        for k in range(10):
            a(f"v_cvt_pk_bf16_f32 {V(AR+k)}, {V(B2F+2*k)}, {V(B2F+2*k+1)}")
        for dl in range(5):
            a(f"ds_write_b64 {V(vOW)}, {V(AR+2*dl,2)} offset:{8*dl}")
        for p in range(3):
            a(f"ds_read_b128 {V(AF+4*p,4)}, {V(vOR)} offset:{p*1024}")
        for p in range(3):
            if p == 2:
                a("s_mov_b32 exec_hi, 0")
            a(f"buffer_store_dwordx4 {V(AF+4*p,4)}, {V(vOS+p)}, {S(R_C,4)}, {S(sXO)} offen")
        a("s_mov_b64 exec, -1")
        if self.prof:
            a.waitall(vm=True)
        self.stamp("end")
        self.dump_stamps(vT)
        a(f"s_or_b32 {S(sT1)}, {S(sJ)}, {S(sW)}")
        a(f"s_cmp_lg_u32 {S(sT1)}, 0")
        a("s_cbranch_scc1 L_end")
        a(f"s_lshl_b32 {S(sT1)}, {S(sR)}, 7")
        a(f"s_add_u32 {S(sT1)}, {S(sT1)}, {WS_EPR}")
        self.put_word(vT, sT1)
        a("s_endpgm")

    def conv(self):
        a = self.a
        o = self.opt
        self.role = 'conv'
        self.names[self.role] = ['start', 'clk0']
        self.nstamp = 2
        vSR, vUR, vRR, vRR2, vT2R, vT3R = 2, 3, 4, 5, 6, 7
        BAND = 8
        MSK = 28
        vW0, vW1, vW2a, vW2b, vWSp, vOUT, vZ, vFL, vEP, vT, vT2, vT3 = range(32, 44)
        vI, vG, vDT, vDS = 44, 45, 46, 47
        KAF, TB2, TB3, ACC, DP, XA, UR = 48, 116, 140, 156, 188, 212, 224
        sCW, sCH, sKA, sAT, sIT = sP0, sP0+1, sP0+2, sP0+3, sP0+4
        if o['prio_conv']:
            a(f"s_setprio {o['prio_conv']}")
        a(f"s_sub_u32 {S(sCW)}, {S(sW)}, 4")
        a(f"s_and_b32 {S(sT1)}, {S(sR)}, 1")
        a(f"s_add_u32 {S(sT0)}, {S(sT1)}, {S(sCW)}")
        a(f"s_cmp_ge_u32 {S(sT0)}, 3")
        a("s_cbranch_scc1 L_end")
        a(f"s_lshr_b32 {S(sCH)}, {S(sR)}, 1")
        a(f"s_mul_i32 {S(sCH)}, {S(sCH)}, 5")
        a(f"s_mul_i32 {S(sT1)}, {S(sT1)}, 3")
        a(f"s_add_u32 {S(sCH)}, {S(sCH)}, {S(sT1)}")
        a(f"s_add_u32 {S(sCH)}, {S(sCH)}, {S(sCW)}")
        a(f"s_lshl_b32 {S(sAT)}, {S(sCH)}, 7")
        a(f"s_mul_i32 {S(sT0)}, {S(sJ)}, {32*AT_BLK}")
        a(f"s_add_u32 {S(sAT)}, {S(sAT)}, {S(sT0)}")
        a(f"s_add_u32 {S(sAT)}, {S(sAT)}, {WS_AT}")
        a(f"s_mul_i32 {S(sT0)}, {S(sJ)}, 80")
        a(f"s_add_u32 {S(sCH)}, {S(sCH)}, {S(sT0)}")
        a(f"s_mul_i32 {S(sKA)}, {S(sCW)}, {KA_SZ}")
        a(f"s_mul_i32 {S(sT0)}, {S(sCH)}, 384")
        a(f"v_lshl_add_u32 {V(vT)}, v1, 2, {S(sT0)}")
        a(f"v_lshl_add_u32 {V(vT2)}, v1, 1, {S(sT0)}")
        a(f"s_lshl_b32 {S(sT0)}, {S(sCH)}, 1")
        a(f"v_mov_b32 {V(vT3)}, {S(sT0)}")
        P01, P2 = 48, 54
        CUR = 60
        Y, Q, TM = 66, 68, 70
        SE = 72
        CV = 132
        AR1, AI1, X0, X1, X2 = 92, 93, 94, 96, 97
        ONE = 98
        BQ, AP = 100, 116
        DK = DP
        a.waitall(lg=True)
        self.srd(R_WS, P_WS, WS_SIZE)
        self.epoch_load(vEP, sJ, WS_EPC)
        a(f"global_load_ushort {V(vDT)}, {V(vT3)}, {S(P_LDT,2)}")
        a(f"global_load_ushort {V(vDS)}, {V(vT3)}, {S(P_DSK,2)}")
        for k, p in enumerate((P_ARE, P_AIM, P_BRE, P_BIM, P_CRE, P_CIM)):
            a(f"global_load_dword {V(P01+k)}, {V(vT)}, {S(p,2)}")
        for k, p in enumerate((P_ARE, P_AIM, P_BRE, P_BIM, P_CRE, P_CIM)):
            a(f"global_load_ushort {V(P2+k)}, {V(vT2)}, {S(p,2)} offset:256")
        a("s_barrier")
        if o['noconv']:
            a("s_endpgm")
        a(f"v_and_b32 {V(vI)}, 15, v1")
        a(f"v_lshrrev_b32 {V(vG)}, 4, v1")
        a(f"v_lshlrev_b32 {V(vT3)}, 3, {V(vG)}")
        bands = [(1, 11), (2, 6), (1, 3), (3, 5), (4, 4)]
        for k, (w, kap) in enumerate(bands + [(None, 12)]):
            ones = 3 if w is None else (1 << (2*w+1)) - 1
            a(f"s_mov_b32 {S(sT0)}, {hex(ones << kap)}")
            a(f"v_lshlrev_b32_e64 {V(vT)}, {V(vI)}, {S(sT0)}")
            a(f"v_lshrrev_b32 {V(vT)}, {V(vT3)}, {V(vT)}")
            for j in range(4):
                r = BAND + 4*k + j
                a(f"v_bfe_u32 {V(r)}, {V(vT)}, {2*j}, 2")
                a(f"v_mul_u32_u24 {V(r)}, 0x8001, {V(r)}")
                a(f"v_and_b32 {V(r)}, 0x10001, {V(r)}")
                a(f"v_mul_u32_u24 {V(r)}, {'0xffff' if w is None else '0x3f80'}, {V(r)}")
        B4, B8, B12, B8w, B16w = BAND, BAND+4, BAND+8, BAND+12, BAND+16
        a(f"v_mul_u32_u24 {V(vSR)}, {ROWB}, {V(vI)}")
        a(f"v_lshl_add_u32 {V(vSR)}, {V(vG)}, 4, {V(vSR)}")
        a(f"v_add_u32 {V(vSR)}, {S(sKA)}, {V(vSR)}")
        a(f"v_lshlrev_b32 {V(vUR)}, 5, {V(vI)}")
        a(f"v_lshl_add_u32 {V(vUR)}, {V(vG)}, 4, {V(vUR)}")
        a(f"s_add_u32 {S(sT0)}, {S(sKA)}, {L_U}")
        a(f"v_add_u32 {V(vUR)}, {S(sT0)}, {V(vUR)}")
        a(f"v_sub_u32 {V(vT)}, {V(vT3)}, {V(vI)}")
        a(f"v_and_b32 {V(vT2)}, 1, v1")
        a(f"v_mul_u32_u24 {V(vT2)}, {K_RB + 2 - K_RA}, {V(vT2)}")
        a(f"v_lshlrev_b32 {V(vRR)}, 1, {V(vT)}")
        a(f"v_sub_u32 {V(vRR)}, {V(vRR)}, {V(vT2)}")
        a(f"s_add_u32 {S(sT0)}, {S(sKA)}, {K_RB + 32}")
        a(f"v_add_u32 {V(vRR)}, {S(sT0)}, {V(vRR)}")
        a(f"v_add_u32 {V(vRR2)}, 1024, {V(vRR)}")
        a(f"v_lshlrev_b32 {V(vT)}, 2, {V(vG)}")
        a(f"v_sub_u32 {V(vT)}, {V(vI)}, {V(vT)}")
        a(f"s_add_u32 {S(sT0)}, {S(sKA)}, {K_N2 + 104}")
        a(f"v_lshl_add_u32 {V(vT2R)}, {V(vT)}, 3, {S(sT0)}")
        a(f"s_add_u32 {S(sT0)}, {S(sKA)}, {K_N3 + 52}")
        a(f"v_lshl_add_u32 {V(vT3R)}, {V(vT)}, 2, {S(sT0)}")
        a(f"v_lshrrev_b32 {V(vT)}, 1, {V(vG)}")
        a(f"v_lshlrev_b32 {V(vT)}, 8, {V(vT)}")
        a(f"v_lshl_add_u32 {V(vT)}, {V(vI)}, 4, {V(vT)}")
        a(f"v_and_b32 {V(vT2)}, 1, {V(vG)}")
        a(f"v_lshl_add_u32 {V(vT)}, {V(vT2)}, 3, {V(vT)}")
        a(f"s_add_u32 {S(sT0)}, {S(sKA)}, {2*539}")
        a(f"v_sub_u32 {V(vW0)}, {S(sT0)}, {V(vT)}")
        a(f"v_lshlrev_b32 {V(vT)}, 8, {V(vT2)}")
        a(f"v_lshl_add_u32 {V(vT)}, {V(vI)}, 4, {V(vT)}")
        a(f"s_add_u32 {S(sT0)}, {S(sKA)}, {2*278}")
        a(f"v_sub_u32 {V(vW1)}, {S(sT0)}, {V(vT)}")
        a(f"v_lshlrev_b32 {V(vT)}, 7, {V(vT2)}")
        a(f"v_add_u32 {V(vT)}, {S(sKA)}, {V(vT)}")
        a(f"v_lshl_add_u32 {V(vW2a)}, {V(vI)}, 1, {V(vT)}")
        a(f"v_add_u32 {V(vW2a)}, {K_N3 + 64}, {V(vW2a)}")
        a(f"v_add_u32 {V(vW2b)}, 32, {V(vW2a)}")
        a("s_mov_b32 exec_hi, 0")
        a(f"v_lshl_add_u32 {V(vW2a)}, {V(vI)}, 2, {V(vT)}")
        a(f"v_add_u32 {V(vW2a)}, {K_N2 + 128}, {V(vW2a)}")
        a(f"v_add_u32 {V(vW2b)}, 2, {V(vW2a)}")
        a("s_mov_b64 exec, -1")
        a(f"s_add_u32 {S(sT0)}, {S(sKA)}, {2*(543-514)}")
        a(f"v_mov_b32 {V(vWSp)}, {S(sT0)}")
        a(f"s_add_u32 {S(sT0)}, {S(sKA)}, {2*543}")
        a(f"v_writelane_b32 {V(vWSp)}, {S(sT0)}, 32")
        a(f"s_add_u32 {S(sT0)}, {S(sKA)}, {2*(543-257)}")
        a(f"v_writelane_b32 {V(vWSp)}, {S(sT0)}, 63")
        a(f"v_lshrrev_b32 {V(vT)}, 1, {V(vG)}")
        a(f"v_lshlrev_b32 {V(vT)}, 2, {V(vT)}")
        a(f"v_bfe_u32 {V(vT3)}, v1, 2, 2")
        a(f"v_add_u32 {V(vT)}, {V(vT)}, {V(vT3)}")
        a(f"v_mul_u32_u24 {V(vOUT)}, {AT_BLK}, {V(vT)}")
        a(f"v_lshl_add_u32 {V(vOUT)}, {V(vT2)}, 6, {V(vOUT)}")
        a(f"v_and_b32 {V(vT)}, 3, v1")
        a(f"v_lshl_add_u32 {V(vOUT)}, {V(vT)}, 4, {V(vOUT)}")
        a(f"v_lshl_add_u32 {V(vZ)}, v1, 4, {S(sKA)}")
        a(f"v_mov_b32 {V(vFL)}, {L_FLAG}")
        a(f"v_mov_b32 {V(ONE)}, 0x3f80")
        for k in range(12):
            a(f"v_mov_b32 {V(DK+k)}, 0")
        a(f"s_mov_b32 m0, {S(sKA)}")
        self.epoch_to_tag(vEP)
        a.waitall(vm=True)
        self.stamp("par_in")
        L2E = math.log2(math.e)
        hi = struct.unpack("<f", struct.pack("<f", L2E))[0]
        a(f"v_lshlrev_b32 {V(vDT)}, 16, {V(vDT)}")
        a(f"s_mov_b32 {S(sT0)}, {f32(hi)}")
        a(f"v_mul_f32 {V(vT)}, {S(sT0)}, {V(vDT)}")
        a(f"v_fma_f32 {V(vT2)}, {V(vDT)}, {S(sT0)}, -{V(vT)}")
        a(f"v_fmac_f32 {V(vT2)}, {f32(L2E - hi)}, {V(vDT)}")
        a(f"v_exp_f32 {V(vT)}, {V(vT)}")
        a(f"v_mul_f32 {V(vT2)}, {f32(math.log(2.0))}, {V(vT2)}")
        a(f"v_fmac_f32 {V(vT)}, {V(vT)}, {V(vT2)}")
        a(f"v_cvt_pk_bf16_f32 {V(vDT)}, {V(vT)}, {V(vT)}")
        a(f"v_and_b32 {V(vDT)}, 0xffff0000, {V(vDT)}")
        a(f"v_lshlrev_b32 {V(vDS)}, 16, {V(vDS)}")

        def E(e): return SE + 2*(e-1)

        def cm_a(x, w):
            a(f"v_mul_f32 {V(TM)}, {V(x)}, {V(w)}")
            a(f"v_mul_f32 {V(TM+1)}, {V(x)}, {V(w+1)}")

        def cm_b(d, x, w):
            a(f"v_fma_f32 {V(d)}, -{V(x+1)}, {V(w+1)}, {V(TM)}")
            a(f"v_fma_f32 {V(d+1)}, {V(x+1)}, {V(w)}, {V(TM+1)}")

        def setup():
            for k in range(6):
                a(f"v_lshlrev_b32_e64 {V(CUR+k)}, 16, {V(P01+k)}")
                a(f"v_alignbit_b32 {V(P01+k)}, {V(P2+k)}, {V(P01+k)}, 16")
            a(f"v_mul_f32 {V(AR1)}, {V(CUR)}, {V(vDT)}")
            a(f"v_mul_f32 {V(AI1)}, {V(CUR+1)}, {V(vDT)}")
            a(f"v_mul_f32 {V(CUR+2)}, {V(CUR+2)}, {V(vDT)}")
            a(f"v_mul_f32 {V(CUR+3)}, {V(CUR+3)}, {V(vDT)}")
            for m, d in ((8, E(8)), (1, E(1)), (128, Y)):
                a(f"v_mul_f32 {V(X1)}, {f32(m/(2*math.pi))}, {V(AI1)}")
                a(f"v_mul_f32 {V(X0)}, {f32(m*L2E)}, {V(AR1)}")
                a(f"v_fract_f32 {V(X1)}, {V(X1)}")
                a(f"v_exp_f32 {V(X0)}, {V(X0)}")
                a(f"v_cos_f32 {V(d)}, {V(X1)}")
                a(f"v_sin_f32 {V(d+1)}, {V(X1)}")
                if m == 8:
                    cm_a(CUR+2, CUR+4)
                elif m == 1:
                    cm_b(Q, CUR+2, CUR+4)
                a(f"v_mul_f32 {V(d)}, {V(d)}, {V(X0)}")
                a(f"v_mul_f32 {V(d+1)}, {V(d+1)}, {V(X0)}")

        pend = []
        cvn = [0]

        def cvt(row, x, neg=False):
            c = CV + cvn[0] % 16
            cvn[0] += 1
            a(f"v_cvt_pk_bf16_f32 {V(c)}, {V(x)}, {'-' if neg else ''}{V(x+1)}")
            pend.append((row, c))

        def wr(keep):
            if keep and len(pend) < o['wb']:
                return
            keep = 0
            while len(pend) > keep:
                row, c = pend.pop(0)
                a(f"ds_write_addtid_b32 {V(c)} offset:{row*ROWB}")

        def reads(dst):
            for sg in range(4):
                a(f"ds_read_b128 {V(dst+4*sg,4)}, {V(vSR)} offset:{64*sg}")

        def kmm(t, sg):
            a(f"v_mfma_f32_16x16x32_bf16 {V(DK+4*t,4)}, {V(AP+4*sg,4)}, {V(BQ+4*sg,4)}, {V(DK+4*t,4)}")

        setup()
        a(f"s_mov_b32 {S(sIT)}, 0")
        a.waitall(vm=True, lg=True)
        a.fence()
        a.align(3)
        a.label("L_kgen")
        for c in range(16):
            if c < 15:
                cm_a(Q, E(8))
            else:
                cm_a(E(1), E(1))
            cvt(c, Q, neg=True)
            if c < 15:
                cm_b(Q, Q, E(8))
            else:
                cm_b(E(2), E(1), E(1))
            wr(1)
        cm_a(E(2), E(1))
        wr(0)
        reads(BQ)
        cm_b(E(3), E(2), E(1))
        todo = [(4, 2, 2), (5, 4, 1), (6, 4, 2), (7, 4, 3)]
        order = [1, 2, 3, 8, 4, 5, 6, 7]
        for k, e in enumerate(order):
            if k < 4:
                cm_a(E(todo[k][1]), E(todo[k][2]))
                cvt(e-1, E(e))
                cm_b(E(todo[k][0]), E(todo[k][1]), E(todo[k][2]))
            else:
                e2 = order[k-4]
                cm_a(E(e2), Y)
                cvt(e-1, E(e))
                cm_b(E(e2), E(e2), Y)
            wr(1)
        for k, e in enumerate(order):
            if k < 4:
                e2 = order[k+4]
                cm_a(E(e2), Y)
                cvt(8+e-1, E(e))
                cm_b(E(e2), E(e2), Y)
            else:
                e2 = (2, 8, 4, 6)[k-4]
                cm_a(E(e2), Y)
                cvt(8+e-1, E(e))
                cm_b(E(e2), E(e2), Y)
            wr(1)
        cm_a(E(2), Y)
        wr(0)
        reads(AP)
        cvt(0, E(2))
        cm_b(E(2), E(2), Y)
        a(f"ds_write_addtid_b32 {V(ONE)} offset:{8*ROWB}")
        for e in (8, 4, 6):
            cm_a(E(e), Y)
            cvt(e//2-1, E(e))
            cm_b(E(e), E(e), Y)
            wr(1)
        cvt(4, E(2))
        kmm(0, 0)
        wr(1)
        cvt(4+2, E(6))
        kmm(0, 1)
        wr(1)
        for k, e in enumerate((8, 4)):
            cm_a(E(e), Y)
            cvt(4+e//2-1, E(e))
            cm_b(E(e), E(e), Y)
            kmm(0, 2+k)
            wr(1)
        cm_a(E(8), Y)
        wr(0)
        reads(AP)
        first = True
        n = 0
        for r in range(4, 16):
            for e in ((8, 4) if r < 8 else (8,)):
                row = 2*(r-4) + e//4 - 1 if r < 8 else r
                last = (r == 15) or (r == 7 and e == 4)
                if not last and not first:
                    cm_a(E(e), Y)
                first = False
                cvt(row, E(e))
                if not last:
                    cm_b(E(e), E(e), Y)
                wr(1)
                if 5 <= n < 9:
                    kmm(1, n-5)
                n += 1
        a(f"s_add_u32 {S(sIT)}, {S(sIT)}, 1")
        a(f"s_cmp_lt_u32 {S(sIT)}, 3")
        wr(0)
        reads(AP)
        setup()
        for sg in range(4):
            kmm(2, sg)
        assert not a.lg
        a("s_cbranch_scc1 L_kgen")
        self.stamp("kgen")
        Z = 72
        for k in range(4):
            a(f"v_mov_b32 {V(Z+k)}, 0")
        for k in range(4):
            a(f"ds_write_b128 {V(vZ)}, {V(Z,4)} offset:{k*1024}")
        D0, D1, D2 = DK, DK+4, DK+8
        C = 76
        a(f"v_cvt_pk_bf16_f32 {V(C)}, {V(D0+3)}, {V(D0+2)}")
        a(f"v_cvt_pk_bf16_f32 {V(C+1)}, {V(D0+1)}, {V(D0)}")
        a(f"v_cvt_pk_bf16_f32 {V(C+2)}, {V(D0+2)}, {V(D0+1)}")
        a(f"v_cvt_pk_bf16_f32 {V(C+3)}, {V(D1+3)}, {V(D1+3)}")
        a(f"v_cvt_pk_bf16_f32 {V(C+4)}, {V(D1+3)}, {V(D1+2)}")
        a(f"v_cvt_pk_bf16_f32 {V(C+5)}, {V(D1+1)}, {V(D1+1)}")
        a(f"v_cvt_pk_bf16_f32 {V(C+6)}, {V(D1+1)}, {V(D1)}")
        a(f"v_cvt_pk_bf16_f32 {V(C+7)}, {V(D1+2)}, {V(D1+1)}")
        a(f"v_add_f32 {V(C+10)}, {V(D1)}, {V(vDS)}")
        a(f"ds_write_b64 {V(vW0)}, {V(C,2)} offset:{K_RB + 2}")
        a(f"ds_write_b16 {V(vW0)}, {V(C)}")
        a(f"ds_write_b32 {V(vW0)}, {V(C+2)} offset:2")
        a(f"ds_write_b16_d16_hi {V(vW0)}, {V(C+1)} offset:6")
        a(f"v_cvt_pk_bf16_f32 {V(C+10)}, {V(C+10)}, {V(C+10)}")
        a(f"v_cvt_pk_bf16_f32 {V(C+8)}, {V(D2)}, {V(D2+1)}")
        a(f"v_cvt_pk_bf16_f32 {V(C+9)}, {V(D2+2)}, {V(D2+3)}")
        a("s_mov_b32 exec_hi, 0")
        a(f"v_mov_b32 {V(C+10)}, {V(C+3)}")
        a(f"v_add_u32 {V(vT)}, {K_RB + 4}, {V(vW1)}")
        a(f"ds_write2_b32 {V(vW1)}, {V(C+3)}, {V(C+4)} offset0:0 offset1:1")
        a(f"ds_write2_b32 {V(vW1)}, {V(C+5)}, {V(C+6)} offset0:2 offset1:3")
        a(f"ds_write_b16 {V(vW1)}, {V(C+3)} offset:{K_RB + 2}")
        a(f"ds_write2_b32 {V(vT)}, {V(C+3)}, {V(C+7)} offset0:0 offset1:1")
        a(f"ds_write_b32 {V(vT)}, {V(C+5)} offset:8")
        a(f"ds_write_b16_d16_hi {V(vT)}, {V(C+6)} offset:12")
        a("s_mov_b32 exec_lo, 0")
        a("s_mov_b32 exec_hi, 0x80000000")
        a(f"v_mov_b32 {V(C+10)}, {V(C)}")
        a("s_mov_b32 exec_lo, 0x80000000")
        a("s_mov_b32 exec_hi, 0x80000001")
        a(f"ds_write_b16 {V(vWSp)}, {V(C+10)}")
        a(f"ds_write_b16 {V(vWSp)}, {V(C+10)} offset:{K_RB + 2}")
        a("s_mov_b64 exec, -1")
        a(f"ds_write_b16 {V(vW2a)}, {V(C+8)}")
        a(f"ds_write_b16_d16_hi {V(vW2b)}, {V(C+8)}")
        a(f"ds_write_b16 {V(vW2a)}, {V(C+9)} offset:64")
        a(f"ds_write_b16_d16_hi {V(vW2b)}, {V(C+9)} offset:64")
        a(f"v_mov_b32 {V(vT)}, {S(sKA)}")
        a.waitall(lg=True)
        for dp in list(range(7, -1, -1)) + list(range(15, 7, -1)) + [16]:
            for h in range(2):
                if dp == 0:
                    ad, off = vRR2, 2*h
                else:
                    ad, off = vRR, 16*(16-dp) + 2*h
                a(f"ds_read2_b32 {V(KAF+4*dp+2*h,2)}, {V(ad)} offset0:{off} offset1:{off+1}")
        a(f"ds_read_u16 {V(vT2)}, {V(vT)} offset:{K_N2 + 382}")
        for dI in (2, 3, 4):
            for h in range(2):
                off = 16*dI - 30 - 2*h
                a(f"ds_read2_b64 {V(TB2+8*(dI-2)+4*h,4)}, {V(vT2R)} offset0:{off} offset1:{off+1}")
        for dI in (4, 5, 6, 7):
            for h in range(2):
                off = 16*(dI-4) + 2*h
                a(f"ds_read2_b32 {V(TB3+4*(dI-4)+2*h,2)}, {V(vT3R)} offset0:{off} offset1:{off+1}")
        a(f"v_lshl_or_b32 {V(vT2)}, {V(vT2)}, 16, {V(vT2)}")
        for k in range(4):
            a(f"v_and_b32 {V(MSK+k)}, {V(MSK+k)}, {V(vT2)}")
        self.stamp("kexp")
        self.spin_lds(vFL, FL_U, vT2, 1)
        self.stamp("u_ok")
        NU = 6
        U2 = UR + 4*NU
        qs = list(range(-7, 57))
        started = set()

        def U(q): return UR + 4*((q + 7) % NU)

        def uread(q):
            a(f"ds_read_b128 {V(U(q),4)}, {V(vUR)} offset:{480 + 64*q}")

        def accmm(I, A, B):
            c = V(ACC+4*I, 4) if I in started else "0"
            started.add(I)
            a(f"v_mfma_f32_16x16x32_bf16 {V(ACC+4*I,4)}, {V(A,4)}, {V(B,4)}, {c}")
        late = []
        for q in qs[:NU-1]:
            uread(q)
        for q in qs:
            if q + NU - 1 <= 56:
                uread(q + NU - 1)
            if (q + 4) % 8 == 0 and 0 <= (q+4)//8 <= 5:
                a(f"ds_read_b128 {V(U2,4)}, {V(vUR)} offset:{480 + 64*(q+4) - 16}")
            f = (-q) % 8
            Ip = q // 8
            if q >= 0 and f == 0 and Ip <= 5:
                s1 = [(0, U(q), B4), (1, U(q), B8), (2, U(q), B12), (3, U2, B8)]
                if Ip <= 3:
                    s1 += [(4, U(q), B8w), (5, U2, B16w)]
                for (k, uu, bb) in s1:
                    a(f"v_mfma_f32_16x16x32_bf16 {V(DP+4*k,4)}, {V(uu,4)}, {V(bb,4)}, 0")

                def pack2(h):
                    for n, (r, k) in enumerate(((2*h+1, 0), (2*h+1, 2), (2*h, 0), (2*h, 2))):
                        a(f"v_cvt_pk_bf16_f32 {V(XA+4*h+n)}, {V(DP+4*k+r)}, {V(DP+4*(k+1)+r)}")

                def pack3():
                    for n, r in enumerate((3, 2, 1, 0)):
                        a(f"v_cvt_pk_bf16_f32 {V(XA+8+n)}, {V(DP+16+r)}, {V(DP+20+r)}")

                def st2(Ip, h):
                    for dI in (2, 3, 4):
                        if Ip + dI <= 7:
                            accmm(Ip+dI, XA+4*h, TB2+8*(dI-2)+4*h)

                def st3(Ip):
                    for dI in (4, 5, 6, 7):
                        if Ip + dI <= 7:
                            accmm(Ip+dI, XA+8, TB3+4*(dI-4))
                late.append((q+1, lambda: pack2(0)))
                late.append((q+2, lambda: pack2(1)))
                late.append((q+2, lambda Ip=Ip: st2(Ip, 0)))
                late.append((q+3, lambda Ip=Ip: st2(Ip, 1)))
                if Ip <= 3:
                    late.append((q+3, pack3))
                    late.append((q+4, lambda Ip=Ip: st3(Ip)))
            for dp in ([f, f+8] + ([16] if f == 0 else [])):
                I = (q + dp)//8
                if 0 <= I <= 7:
                    accmm(I, KAF+4*dp, U(q))
            if q >= 0 and f == 0 and Ip <= 3:
                accmm(Ip+4, MSK, U(q))
            if q >= 0 and f == 0 and Ip % 2 == 1:
                def out(I=Ip-1):
                    r = ACC + 4*I
                    a(f"v_cvt_pk_bf16_f32 {V(r)}, {V(r)}, {V(r+1)}")
                    a(f"v_cvt_pk_bf16_f32 {V(r+1)}, {V(r+2)}, {V(r+3)}")
                    a(f"v_cvt_pk_bf16_f32 {V(r+2)}, {V(r+4)}, {V(r+5)}")
                    a(f"v_cvt_pk_bf16_f32 {V(r+3)}, {V(r+6)}, {V(r+7)}")

                def out2(I=Ip-1):
                    r = ACC + 4*I
                    a(f"v_permlane32_swap_b32 {V(r)}, {V(r+2)}")
                    a(f"v_permlane32_swap_b32 {V(r+1)}, {V(r+3)}")
                    a(f"buffer_store_dwordx4 {V(r,4)}, {V(vOUT)}, {S(R_WS,4)}, {S(sAT)} offen sc1")
                    a(f"s_add_u32 {S(sAT)}, {S(sAT)}, {8*AT_BLK}")
                late.append((q+5, out))
                late.append((q+6, out2))
            late.sort(key=lambda x: x[0])
            while late and (late[0][0] <= q or q == 56):
                late.pop(0)[1]()
        self.stamp("cend")
        a(f"s_lshl_b32 {S(sT1)}, {S(sCH)}, 7")
        a(f"s_add_u32 {S(sT1)}, {S(sT1)}, {WS_F3}")
        a.waitall(vm=True)
        self.put_word(vT, sT1)
        self.stamp("pub")
        self.dump_stamps(vT)
        a("s_endpgm")


if __name__ == "__main__":
    for e in range(320):
        assert (e*6554) >> 16 == e//10
    for e in range(192):
        assert (e*10923) >> 16 == e//6
    out = sys.argv[1] if len(sys.argv) > 1 else f"cdna_kernels/{NAME}.s"
    opts = {}
    for x in sys.argv[2:]:
        k, v = x.split("=")
        opts[k] = int(v)
    g = Gen(**opts)
    t = g.build()
    open(out, "w").write(t)
    print("written", out, "lines", t.count("\n"), "nop states", g.a.nops)
```
